```python
import torch

def _softmax(x, axis=-1):
    return torch.softmax(x, dim=axis)
def _gelu(x):
    return torch.nn.functional.gelu(x, approximate="tanh")
def _silu(x):
    return torch.nn.functional.silu(x)
def _sigmoid(x):
    return torch.sigmoid(x)
def _layernorm(x, axis=-1, eps=1e-5):
    m = x.mean(dim=axis, keepdim=True)
    v = x.var(dim=axis, keepdim=True, unbiased=False)
    return (x - m) / torch.sqrt(v + eps)
def _scatter_add(tgt, idx, src, axis=0):
    return tgt.clone().index_add_(axis, idx, src)
def _segment_sum(src, seg, n):
    out = torch.zeros((n,) + src.shape[1:], dtype=src.dtype)
    return out.index_add_(0, seg, src)
def _pad(x, pw):
    flat = tuple(v for pair in reversed(pw) for v in pair)
    return torch.nn.functional.pad(x, flat)

kernel_name = 'parallel_sum__linear_attn_block__moe_arch_mod__prompt'

def setup_inputs():

    _w = (lambda a: (lambda t: t.to(torch.bfloat16) if t.is_floating_point() else t)(torch.as_tensor(a)))
    def _A_setup():
        B, S, D = 1, 2048, 1024
        return {
            "x": _w((lambda *s: torch.randn(*s, dtype=torch.bfloat16) * 0.05)(B, S, D)),
            "wqkv": _w((lambda *s: torch.randn(*s, dtype=torch.bfloat16) * 0.4)(D, 3 * D)),
            "wo": _w((lambda *s: torch.randn(*s, dtype=torch.bfloat16) * 0.2)(D, D)),
        }
    _A_in = _A_setup()

    def _B_setup():
        B, S, D, F, C = 1, 2048, 1024, 3584, 8
        return {
            "x": _w((lambda *s: torch.randn(*s, dtype=torch.bfloat16) * 0.05)(B, S, D)),
            "w_r": _w((lambda *s: torch.randn(*s, dtype=torch.bfloat16) * 0.05)(D)),
            "w_gate": _w((lambda *s: torch.randn(*s, dtype=torch.bfloat16) * 0.05)(D, F)),
            "w_up": _w((lambda *s: torch.randn(*s, dtype=torch.bfloat16) * 0.05)(D, F)),
            "w_down": _w((lambda *s: torch.randn(*s, dtype=torch.bfloat16) * 0.05)(F, D)),
        }
    _B_in = _B_setup()

    return {
        "A_x": _A_in["x"],
        "A_wqkv": _A_in["wqkv"],
        "A_wo": _A_in["wo"],
        "B_x": _B_in["x"],
        "B_w_r": _B_in["w_r"],
        "B_w_gate": _B_in["w_gate"],
        "B_w_up": _B_in["w_up"],
        "B_w_down": _B_in["w_down"],
    }

def reference(A_x, A_wqkv, A_wo, B_x, B_w_r, B_w_gate, B_w_up, B_w_down):
    def _A_ref(x, wqkv, wo):
        B, S, D = x.shape
        H = 32; Dh = D // H
        qkv = (lambda x, *d: x.permute(*d))((x @ wqkv).reshape(B, S, 3, H, Dh), 2, 0, 3, 1, 4)
        q, k, v = qkv[0], qkv[1], qkv[2]
        phi = lambda t: torch.where(t > 0, t + 1, torch.exp(t)) + 1e-6
        pq, pk = phi(q), phi(k)
        kv = torch.einsum("bhsd,bhse->bhde", pk, v)
        z = torch.einsum("bhsd->bhd", pk)
        num = torch.einsum("bhqd,bhde->bhqe", pq, kv)
        den = torch.einsum("bhqd,bhd->bhq", pq, z)[..., None] + 1e-6
        o = num / den
        return (lambda x, *d: x.permute(*d))(o, 0, 2, 1, 3).reshape(B, S, D) @ wo

    def _B_ref(x, w_r, w_gate, w_up, w_down):
        B, S, D = x.shape
        C = 8
        r = x @ w_r
        idx = torch.argsort(-r, axis=-1)[:, :C]
        idx_e = (lambda x, n, axis: torch.repeat_interleave(x, n, dim=axis))(idx.reshape(B, C, 1), D, axis=2)
        x_sel = (lambda x, i, axis: torch.take_along_dim(x, i, dim=axis))(x, idx_e, axis=1)
        g = _silu(x_sel @ w_gate)
        u = x_sel @ w_up
        y = (g * u) @ w_down
        r_sel = _sigmoid((lambda x, i, axis: torch.take_along_dim(x, i, dim=axis))(r, idx, axis=1))
        y = y * r_sel.reshape(B, C, 1)
        b_off = (torch.arange(B) * S).reshape(B, 1)
        flat_idx = (idx + b_off).reshape(B * C)
        zero = (x * 0.0).reshape(B * S, D)
        upd = _scatter_add(zero, flat_idx, y.reshape(B * C, D), axis=0)
        return x + upd.reshape(B, S, D)

    x = A_x
    xn = _layernorm(x, axis=-1)
    return x + _A_ref(xn, A_wqkv, A_wo) + _B_ref(xn, B_w_r, B_w_gate, B_w_up, B_w_down)
```

```python
import re

TRANS = ("v_exp_f32", "v_log_f32", "v_rcp_f32", "v_rsq_f32", "v_sqrt_f32", "v_sin_f32", "v_cos_f32", "v_rcp_iflag_f32",
         "v_exp_f16", "v_log_f16", "v_rcp_f16", "v_rsq_f16", "v_sqrt_f16")

def regs_of(tok):
    tok = tok.strip()
    tok = re.sub(r"^-", "", tok)
    m = re.match(r"^(?:abs|neg)\((.*)\)$", tok)
    if m: tok = m.group(1)
    tok = tok.strip("|")
    m = re.match(r"^([vsa])(\d+)$", tok)
    if m: return {m.group(1) + m.group(2)}
    m = re.match(r"^([vsa])\[(\d+):(\d+)\]$", tok)
    if m: return {m.group(1) + str(i) for i in range(int(m.group(2)), int(m.group(3)) + 1)}
    if tok in ("vcc", "vcc_lo", "vcc_hi"): return {"vcc"}
    if tok in ("exec", "exec_lo", "exec_hi"): return {"exec"}
    if tok == "m0": return {"m0"}
    return set()

def split_ops(s):
    out, depth, cur = [], 0, ""
    for ch in s:
        if ch in "[(": depth += 1
        if ch in "])": depth -= 1
        if ch == "," and depth == 0:
            out.append(cur); cur = ""
        else:
            cur += ch
    out.append(cur)
    return [o.strip() for o in out if o.strip()]

class Ins:
    def __init__(self, text):
        self.text = text
        t = text.split(";")[0].strip()
        self.is_label = t.endswith(":")
        self.is_dir = t.startswith(".")
        self.empty = (t == "")
        self.op = ""
        self.w = set(); self.r = set()
        self.kind = "other"
        self.states = 1
        if self.is_label or self.is_dir or self.empty:
            self.states = 0
            return
        parts = t.split(None, 1)
        op = parts[0]; self.op = op
        rest = parts[1] if len(parts) > 1 else ""
        ops = split_ops(rest)
        mods = ""
        if ops:
            last = ops[-1].split(None, 1)
            ops[-1] = last[0]
            mods = last[1] if len(last) > 1 else ""
        self.mods = mods
        self.ops = ops
        R = [regs_of(o) for o in ops]
        base = re.sub(r"_(e32|e64|dpp|sdwa)$", "", op)
        self.base = base
        if op == "s_nop":
            self.states = int(ops[0], 0) + 1
            self.kind = "nop"
        elif op.startswith("v_mfma") or op.startswith("v_smfmac"):
            self.kind = "mfma"
            self.w = R[0]; self.a = R[1]; self.b = R[2]; self.c = R[3]
            self.r = R[1] | R[2] | R[3]
            self.passes = 8 if "32x32" in op else 4
            if "_f32_32x32x2_f32" in op: self.passes = 16
            if "_f32_16x16x4_f32" in op: self.passes = 8
        elif op.startswith("v_"):
            self.kind = "valu"
            nd = 1
            if base in ("v_add_co_u32", "v_sub_co_u32", "v_subrev_co_u32", "v_addc_co_u32", "v_subb_co_u32", "v_subbrev_co_u32", "v_div_scale_f32", "v_mad_u64_u32"):
                nd = 2
            for x in R[:nd]: self.w |= x
            for x in R[nd:]: self.r |= x
            if base.startswith("v_cmpx"): self.w |= {"exec"}
            if base in ("v_fmac_f32", "v_pk_fmac_f16", "v_dot2c_f32_bf16", "v_fmac_f16", "v_writelane_b32") or "swap" in base:
                self.r |= R[0]
            if "swap" in base:
                self.w |= R[1]
            if base == "v_cndmask_b32" and len(ops) == 3: self.r |= {"vcc"}
            if base == "v_div_fmas_f32": self.r |= {"vcc"}
            self.dpp = ("row_" in mods or "quad_perm" in mods or "wave_" in mods or op.endswith("_dpp"))
            if self.dpp: self.r |= R[0]
            self.trans = base in TRANS
        elif op.startswith("buffer_") or op.startswith("global_") or op.startswith("flat_"):
            self.kind = "vmem"
            allr = set()
            for x in R: allr |= x
            self.lds = bool(re.search(r"\blds\b", mods)) or "_lds_" in op
            if "load" in op and not self.lds:
                self.w = R[0]
                for x in R[1:]: self.r |= x
            elif "atomic" in op:
                self.r = allr
                if "sc0" in mods: self.w = R[0]
            else:
                self.r = allr
            if self.lds: self.r |= {"m0"}
            self.wide_store = ("store" in op and ("x3" in op or "x4" in op))
            if self.wide_store:
                self.data = R[0] if op.startswith("buffer_") else R[1]
        elif op.startswith("ds_"):
            self.kind = "ds"
            if op.startswith("ds_read") or "permute" in op or "swizzle" in op or "_rtn" in op:
                self.w = R[0]
                for x in R[1:]: self.r |= x
            else:
                for x in R: self.r |= x
        elif op.startswith("s_"):
            self.kind = "salu"
            if op.startswith("s_cmp") or op.startswith("s_cbranch") or op in ("s_branch", "s_waitcnt", "s_barrier", "s_endpgm", "s_setprio", "s_sleep", "s_bitcmp0_b32", "s_bitcmp1_b32"):
                for x in R: self.r |= x
            else:
                if R:
                    self.w = R[0]
                    for x in R[1:]: self.r |= x
                if "saveexec" in op: self.w |= {"exec"}

def need(p, c):
    n = 0
    isv = lambda s: {x for x in s if x[0] in "va" and x not in ("vcc",)}
    iss = lambda s: {x for x in s if x[0] == "s" or x == "vcc"}
    if p.kind == "valu":
        pw_v = isv(p.w); pw_s = iss(p.w)
        if c.kind == "mfma" and pw_v & c.r: n = max(n, 2)
        if c.kind == "mfma" and "exec" in p.w: n = max(n, 4)
        if c.kind == "valu":
            if p.trans and (pw_v & c.r) and not c.trans: n = max(n, 1)
            if p.trans and (pw_v & c.r): n = max(n, 1)
            if c.dpp and pw_v & c.r: n = max(n, 2)
            if c.dpp and "exec" in p.w: n = max(n, 5)
            if c.base in ("v_readlane_b32", "v_readfirstlane_b32") and pw_v & c.r: n = max(n, 1)
            if "permlane" in c.base and pw_v & (c.r | c.w): n = max(n, 2)
            if pw_s & c.r:
                n = max(n, 2)
                if c.base in ("v_readlane_b32", "v_writelane_b32"): n = max(n, 4)
                if c.base == "v_div_fmas_f32": n = max(n, 4)
            if "exec" in p.w:
                if c.base in ("v_readlane_b32", "v_readfirstlane_b32", "v_writelane_b32") or "permlane" in c.base: n = max(n, 4)
                elif "exec" in c.r: n = max(n, 2)
        if c.kind == "vmem" and pw_s & c.r: n = max(n, 5)
        if c.kind == "salu" and pw_s & c.r: n = max(n, 1)
    if p.kind == "mfma":
        big = {4: 8, 8: 12, 16: 20}[p.passes]
        if c.kind == "mfma":
            if p.w & (c.a | c.b): n = max(n, big)
            if p.w & c.c:
                if not (p.w == c.c and p.passes == c.passes): n = max(n, big - 2)
            if (p.w & c.w) and not (p.w == c.c): n = max(n, big - 2)
        elif c.kind in ("valu", "vmem", "ds"):
            if p.w & (c.r | c.w): n = max(n, big)
            if c.kind == "valu" and (p.c & c.w): n = max(n, {4: 3, 8: 7, 16: 15}[p.passes])
    if p.kind == "salu":
        if "m0" in p.w and c.kind == "vmem" and c.lds: n = max(n, 1)
    if p.kind == "vmem" and getattr(p, "wide_store", False):
        if p.data & c.w: n = max(n, 2)
    return n

def pad(lines, verbose=False):
    out = []
    hist = []
    npad = 0
    lg = 0; vm = 0
    for text in lines:
        ins = Ins(text)
        if ins.states == 0:
            out.append(text)
            continue
        if ins.op == "s_waitcnt":
            m = re.search(r"lgkmcnt\((\d+)\)", text)
            if m: lg = min(lg, int(m.group(1)))
            m = re.search(r"vmcnt\((\d+)\)", text)
            if m: vm = min(vm, int(m.group(1)))
        inc = 0
        if ins.kind == "ds": inc = 1
        elif ins.op == "s_load_dword": inc = 1
        elif ins.op.startswith("s_load") or ins.op.startswith("s_atomic") or ins.op.startswith("s_mem") or ins.op.startswith("s_buffer"): inc = 2
        if inc and lg + inc > 15:
            out.append("    s_waitcnt lgkmcnt(8)")
            hist.append(Ins("s_waitcnt lgkmcnt(8)"))
            lg = 8
            pass
        lg += inc
        if ins.kind == "vmem":
            vm += 1
            if vm > 63 and verbose: print("WARNING vmcnt overflow at", text.strip())
        if ins.op in ("s_endpgm", "s_branch"): lg = 0; vm = 0
        dist = 0
        req = 0
        for p in reversed(hist):
            k = need(p, ins) - dist
            if k > req: req = k
            dist += p.states
            if dist > 24: break
        while req > 0:
            k = min(req, 16)
            nop = Ins("s_nop %d" % (k - 1))
            out.append("    s_nop %d" % (k - 1))
            hist.append(nop)
            req -= k
            npad += 1
        out.append(text)
        hist.append(ins)
        if ins.op in ("s_endpgm", "s_branch"):
            hist = []
        if len(hist) > 40: hist = hist[-40:]
    if verbose: print("hazard pads inserted:", npad)
    return out
```

```python
INF = 99

def allocate(DR, R, NG=19, nxe=4, MSC=6, NQ0=99, SS=1, SF=2, verbose=False):
    drains = {}
    v = 0
    for t in range(16):
        drains[t] = []
        for _ in range(DR[t]):
            assert v // 2 <= t and v // 2 < 16 - R
            drains[t].append((v // 2, v % 2)); v += 1
    assert v % 2 == 0
    nd = v // 2
    qfirst = {g: min(t for t in drains if (g, 0) in drains[t]) for g in range(nd)}
    qlast = {g: min(t for t in drains if (g, 1) in drains[t]) for g in range(nd)}
    avail = [-1] * NG
    res = {}
    order = []
    for t in range(16):
        pre = [("Q", g, t) for g in range(nd) if qfirst[g] == t and g == 0 and t > 0]
        if t == SS and t > 0: pre = [("S", 0, t), ("S", 1, t)] + pre
        order += pre + [("X", t, t), ("K", t, t), ("V", t, t)]
        if t == SS == 0: order += [("S", 0, t), ("S", 1, t)]
        order += [("Q", g, t) for g in range(nd) if qfirst[g] == t and ("Q", g, t) not in pre]
    ret = list(range(16 - R, 16))
    parked = list(range(nd, 16 - R))
    qorder = parked[:1] + ret + parked[1:]
    npair = max(nxe, R)
    nq0 = min(len(qorder), NG - 2 * npair - 1, NQ0)
    last_after = -1
    def place(kind, t, fr):
        nonlocal last_after
        hold = fr == INF
        if kind == "X":
            lim = npair if hold else nxe
            best = min(range(lim), key=lambda p: (max(avail[2 * p], avail[2 * p + 1], last_after), -p if hold else p))
            af = max(avail[2 * best], avail[2 * best + 1])
            avail[2 * best] = avail[2 * best + 1] = fr
            gr = 2 * best
        else:
            lo = 2 * nxe if t < 16 - R - 2 else 2 * npair
            lo = max(lo, 11 if (kind == "Q" and not hold) else 8)
            cands = [c for c in range(lo, NG) if avail[c] < INF]
            best = min(cands, key=lambda c: (max(avail[c], last_after), (-c if kind == "Q" else c)))
            af = avail[best]
            avail[best] = fr
            gr = best
        last_after = max(last_after, af)
        return gr, last_after
    for (kind, g, t) in order:
        fr = INF if (kind == "X" and g in ret) else (qlast[g] + 1 if kind == "Q" else SF if kind == "S" else g + 1)
        res[(kind, g)] = place(kind, t, fr)
        assert res[(kind, g)][1] < t or t == 0, (kind, g, t, res[(kind, g)])
    tail = []
    for g in qorder[:nq0]:
        res[("Q", g)] = place("Q", 99, INF); tail.append(("Q", g))
    rest = [c for c in range(NG) if avail[c] < INF]
    kx = rest[-1]
    nst = len(qorder)
    free = {c: 0 for c in rest}
    xs = {n: res[("X", g)][0] for n, g in enumerate(qorder) if g in ret}
    qs = {n: res[("Q", g)][0] for n, g in enumerate(qorder[:nq0])}
    for n in xs: free[xs[n]] = n + 1; free[xs[n] + 1] = n + 1
    for n in qs: free[qs[n]] = n + 1
    del free[kx]
    acts = []
    for n in range(nq0, nst):
        gr = min((c for c in free if c >= 8), key=lambda c: (free[c], c))
        acts.append((free[gr], "wq", n, gr)); qs[n] = gr
        free[gr] = n + 1
    wos = sorted(free.items(), key=lambda x: (x[1], x[0]))
    cand = [x for x in wos if x[1] <= MSC]
    if len(cand) < 2: cand = wos[:3]
    best = max(((x, y) for x in cand for y in cand if x[0] < y[0] <= x[0] + 6), key=lambda p: min(p[0][1], p[1][1]))
    ms = (best[0][0], best[1][0]); ms_at = max(best[0][1], best[1][1])
    wos = [x for x in wos if x not in best]
    assert len(wos) >= 16, len(wos)
    wo = {}
    for m in range(16):
        acts.append((wos[m][1], "wo", m, wos[m][0])); wo[m] = wos[m][0]
    out = dict(order=order, tail=tail, res=res, qorder=qorder, parked=parked, ret=ret, kx=kx, xs=xs, qs=qs, wo=wo, ms=ms, ms_at=ms_at, acts=acts, nq0=nq0, drains=drains, qfirst=qfirst)
    if verbose:
        print(" ".join("%s%d:%d@%d" % (k, g, res[(k, g)][0], res[(k, g)][1]) for k, g in [x[:2] for x in order] + tail))
        print("qorder", qorder, "kx", kx, "ms", ms, ms_at)
        print(" ".join("%d:%s%d>%d" % x for x in acts))
    return out

if __name__ == "__main__":
    allocate([1] * 12 + [0] * 4, 4, verbose=True)
    allocate([0] + [1] * 10 + [0] * 5, 5, verbose=True)
```

```python
class Asm:
    def __init__(self):
        self.lines = []
        self.launches = []
        self.kernels = []
        self._lab = 0

    def __call__(self, s):
        for l in s.strip("\n").split("\n"):
            self.lines.append("    " + l.strip() if not l.strip().endswith(":") else l.strip())

    def label(self, base="L"):
        self._lab += 1
        return "%s_%d" % (base, self._lab)

    def comment(self, s):
        self.lines.append("    ; " + s)

    def begin_kernel(self, name):
        self.lines.append(".globl %s" % name)
        self.lines.append(".p2align 8")
        self.lines.append(".type %s,@function" % name)
        self.lines.append("%s:" % name)

    def end_kernel(self, name, vgpr, sgpr=102, accum=None):
        if accum is None:
            accum = (min(vgpr, 256) + 3) // 4 * 4
        self.kernels.append((name, vgpr, sgpr, accum))

    def launch(self, name, grid, block, lds):
        self.launches.append((name, grid, block, lds))

    def srd(self, d, base, nbytes, off=0):
        if off:
            self("s_add_u32 s%d, s%d, 0x%x" % (d, base, off))
            self("s_addc_u32 s%d, s%d, 0" % (d + 1, base + 1))
        else:
            self("s_mov_b32 s%d, s%d" % (d, base))
            self("s_mov_b32 s%d, s%d" % (d + 1, base + 1))
        self("s_mov_b32 s%d, 0x%x" % (d + 2, nbytes))
        self("s_mov_b32 s%d, 0x00020000" % (d + 3))

    def text(self, header=""):
        out = []
        if header:
            out.append(header.rstrip("\n"))
        for (n, g, b, l) in self.launches:
            out.append("; @launch kernel=%s grid=(%d,1,1) block=(%d,1,1) lds=%d" % (n, g, b, l))
        out.append('.amdgcn_target "amdgcn-amd-amdhsa--gfx950"')
        out.append(".text")
        out += self.lines
        out.append('.section .rodata,"a"')
        for (n, v, s, a) in self.kernels:
            out.append(".p2align 6")
            out.append(".amdhsa_kernel %s" % n)
            out.append("  .amdhsa_next_free_vgpr %d" % v)
            out.append("  .amdhsa_next_free_sgpr %d" % s)
            out.append("  .amdhsa_accum_offset %d" % a)
            out.append("  .amdhsa_group_segment_fixed_size 0")
            out.append("  .amdhsa_kernarg_size 88")
            out.append("  .amdhsa_user_sgpr_count 2")
            out.append("  .amdhsa_user_sgpr_kernarg_segment_ptr 1")
            out.append("  .amdhsa_system_sgpr_workgroup_id_x 1")
            out.append("  .amdhsa_float_denorm_mode_32 3")
            out.append("  .amdhsa_float_denorm_mode_16_64 3")
            out.append(".end_amdhsa_kernel")
        return "\n".join(out) + "\n"
```

```python
import sys, os
sys.path.insert(0, os.path.dirname(os.path.abspath(__file__)))
from asmlib import Asm
from sched import LgkmStream
import hazard

NAME = "parallel_sum__linear_attn_block__moe_arch_mod__prompt"
MB = 1 << 20
G = 8192
LOG2E = 0x3fb8aa3b
EPS6 = 0x358637bd
EPS5 = 0x3727c5ac
DIAG_OFF = 12 * MB


class Diag:
    def __init__(self, a, on, vreg, cyc=0):
        self.a = a; self.on = on; self.v = vreg; self.cyc = cyc
    def t(self, i, S=None):
        if self.on:
            a = self.a
            a("s_memtime s[92:93]" if self.cyc else "s_memrealtime s[92:93]")
            a("s_waitcnt lgkmcnt(0)")
            a("v_writelane_b32 v%d, s92, %d" % (self.v, i))
            if S: S.pend = []
    def out(self, tab):
        if self.on:
            a = self.a
            a.srd(84, 72, MB, DIAG_OFF + 65536 + tab * 16384)
            a("s_lshl_b32 s92, s2, 6")
            a("s_mov_b64 exec, 0xffff")
            a("v_lshlrev_b32 v1, 2, v0")
            a("buffer_store_dword v%d, v1, s[84:87], s92 offen" % self.v)


def spin_guard(a):
    if getattr(a, "safe", None):
        a("s_sub_u32 s90, s90, 1")
        a("s_cbranch_scc1 %s" % a.safe)


def flag_wait(a, vf, vaddr, need, sleep=0, off=0, S=None):
    lab = a.label("FW"); lab2 = a.label("FO")
    rd = "ds_read_b32 v%d, v%d offset:%d" % (vf, vaddr, off)
    a(rd)
    a("%s:" % lab)
    spin_guard(a)
    a("s_waitcnt lgkmcnt(0)")
    a("v_cmp_gt_u32 vcc, %s, v%d" % (need, vf))
    a("s_cbranch_vccz %s" % lab2)
    if sleep: a("s_sleep %d" % sleep)
    a(rd)
    a("s_branch %s" % lab)
    a("%s:" % lab2)
    if S: S.pend = []


def s_poll(a, sb, target, stmp, sleep=1, off=0):
    lab = a.label("SP"); lab2 = a.label("SD")
    a("%s:" % lab)
    spin_guard(a)
    a("s_load_dword s%d, s[%d:%d], %d glc" % (stmp, sb, sb + 1, off))
    a("s_waitcnt lgkmcnt(0)")
    a("s_cmp_ge_u32 s%d, %d" % (stmp, target))
    a("s_cbranch_scc1 %s" % lab2)
    if sleep: a("s_sleep %d" % sleep)
    a("s_branch %s" % lab)
    a("%s:" % lab2)


def s_addr(a, sb, soff, const):
    a("s_add_u32 s%d, s%d, 0x%x" % (sb, soff, const))
    a("s_add_u32 s%d, s72, s%d" % (sb, sb))
    a("s_addc_u32 s%d, s73, 0" % (sb + 1))


def wave_reduce(a, op, v, s):
    for m in ("row_shr:1", "row_shr:2", "row_shr:4", "row_shr:8"):
        a("%s_dpp v%d, v%d, v%d %s row_mask:0xf bank_mask:0xf bound_ctrl:0" % (op, v, v, v, m))
    a("%s_dpp v%d, v%d, v%d row_bcast:15 row_mask:0xa bank_mask:0xf" % (op, v, v, v))
    a("%s_dpp v%d, v%d, v%d row_bcast:31 row_mask:0xc bank_mask:0xf" % (op, v, v, v))
    a("v_readlane_b32 s%d, v%d, 63" % (s, v))


def class_tables(I=2, d0=1, dl=1):
    tabs = [[c % I] for c in range(4)]
    intro = {b: 0 for b in range(I)}
    nxt = I
    for s in range(1, 16):
        for c in range(4):
            if s >= d0 and c == s % 4 and nxt < 16:
                tabs[c].append(nxt); intro[nxt] = s; nxt += 1; continue
            av = [b for b in sorted(intro, key=lambda b: (intro[b], (b - c) % I if b < I else b)) if b not in tabs[c] and (intro[b] <= s - dl or intro[b] == 0)]
            if not av:
                av = [b for b in sorted(intro) if b not in tabs[c]]
            if not av:
                av = [nxt]; intro[nxt] = s; nxt += 1
            tabs[c].append(av[0])
    for t in tabs: assert sorted(t) == list(range(16)), t
    import itertools
    best = None
    for perm in itertools.permutations(range(8)):
        st = [tabs[k & 3].index(perm[k]) for k in range(8)]
        if best is None or (max(st), sum(st)) < (max(best), sum(best)): best = st
    return tabs, best


def pr(r): return "v[%d:%d]" % (r, r + 1)
def q4(r): return "v[%d:%d]" % (r, r + 3)
def pack_list(dst, b, n):
    return ["v_cvt_pk_bf16_f32 v%d, v%d, v%d" % (dst + i, b + 2 * i, b + 2 * i + 1) for i in range(n // 2)]
def mfma16(d, A, B, first):
    return "v_mfma_f32_16x16x32_bf16 %s, %s, %s, %s" % (q4(d), q4(A), q4(B), "0" if first else q4(d))


def f32(x):
    import struct
    return struct.unpack("<I", struct.pack("<f", x))[0]


def phi(regs, tmp):
    out = []
    for i, d in enumerate(regs):
        out += ["v_exp_f32 v%d, v%d clamp" % (tmp + 2 * i + h, d + h) for h in range(2)]
    out += ["v_pk_mul_f32 %s, %s, s[40:41] clamp" % (pr(d), pr(d)) for d in regs]
    out += ["v_pk_add_f32 %s, %s, s[74:75]" % (pr(tmp + 2 * i), pr(tmp + 2 * i)) for i in range(len(regs))]
    out += ["v_pk_fma_f32 %s, %s, s[76:77], %s" % (pr(d), pr(d), pr(tmp + 2 * i)) for i, d in enumerate(regs)]
    return out


def latin_tables(d0=1, dl=1, order=0):
    tabs = [[c] for c in range(8)]
    for p in range(2):
        own = [p + 2 * k for k in range(4)]; oth = [1 - p + 2 * k for k in range(4)]
        if order == 0: new = oth + [8 + b for b in own] + [8 + b for b in oth]
        else: new = [8 + b for b in own] + oth + [8 + b for b in oth]
        intro = {b: 0 for b in own}
        for s_ in range(1, 16):
            for k, c in enumerate(own):
                if s_ >= d0 and k == s_ % 4 and new:
                    b = new.pop(0); tabs[c].append(b); intro[b] = s_; continue
                av = [b for b in sorted(intro, key=lambda b: (intro[b], (b - c) % 8)) if b not in tabs[c] and (intro[b] <= s_ - dl or intro[b] == 0)]
                if not av: av = [b for b in sorted(intro) if b not in tabs[c]]
                if not av:
                    b = new.pop(0); intro[b] = s_; av = [b]
                tabs[c].append(av[0])
    for t in tabs: assert sorted(t) == list(range(16)), t
    return tabs, [0] * 8


def s_signal(a, sb, stmp, n=4, stride=128):
    a("s_mov_b32 s%d, 1" % stmp)
    for k in range(n): a("s_atomic_add s%d, s[%d:%d], 0x%x" % (stmp, sb, sb + 1, k * stride))
```

```python
from common import *


def aux(a, env):
    import g4 as M
    cfg = env["cfg"]; P = env["P"]; AL = env["AL"]
    dg = env["dg"]; fset = env["fset"]; MS = env["MS"]; NT = env["NT"]; name = env["name"]
    C_PRE = M.C_PRE
    assert C_PRE + 28 * 512 <= M.R_KV
    QF = P["qfirst"][0]
    assert QF <= 1
    AB = cfg.get("abl", 0)
    XS = 16; WS = 32
    RECL = M.YL
    a("; @@PRI:-:0@@")
    a("F_aux:")
    a("s_setprio %d" % cfg.get("aprio0", 3))
    a("""
    s_sub_u32 s3, s3, 8
    s_mov_b32 s88, s3                ; == 2 while the selection still has to be copied to LDS
    v_lshrrev_b32 v5, 4, v0          ; q
    s_cmp_eq_u32 s3, 1
    s_mov_b32 s45, %d
    s_cselect_b32 s45, %d, s45
    s_cmp_eq_u32 s3, 2
    s_cselect_b32 s45, %d, s45
    v_bfe_u32 v60, v0, 2, 2          ; r
    v_lshl_add_u32 v62, v5, 3, v60   ; row = 8q + r
    v_lshrrev_b32 v60, 1, v60
    v_and_b32 v63, 1, v5
    v_lshl_add_u32 v60, v63, 1, v60  ; f
    v_lshlrev_b32 v60, 5, v60
    v_lshl_add_u32 v60, v62, 7, v60
    v_and_b32 v63, 3, v0
    v_lshl_add_u32 v60, v63, 3, v60
    v_add_u32 v62, s45, v60
    v_xor_b32 v63, 32, v62
    v_xor_b32 v64, 64, v62
    v_xor_b32 v65, 96, v62
    v_lshlrev_b32 v2, 4, v0
    v_lshlrev_b32 v3, 2, v0
    v_and_b32 v7, 15, v0             ; c
    v_and_b32 v8, 7, v0
    v_lshlrev_b32 v8, 4, v8
    v_lshl_add_u32 v8, v5, 7, v8     ; w_r voffset: q*128 + kappa*16
    v_bfe_u32 v9, v0, 3, 1
    v_lshl_add_u32 v4, v9, 11, v8    ; x voffset
    v_and_b32 v9, 1, v0              ; row select: lane 0 / lane 1
    v_lshlrev_b32 v59, 2, v7
    s_lshl_b32 s76, s32, 4
    s_add_u32 s76, s76, s33          ; record id
    s_lshl_b32 s77, s76, 3
    s_lshl_b32 s44, s3, 1
    s_add_u32 s77, s77, s44          ; first row
    v_mov_b32 v12, 0
    v_mov_b32 v13, 0
    v_mov_b32 v14, 0
    v_mov_b32 v15, 0
    s_lshl_b32 s75, s3, 4
    s_add_u32 s75, s75, s33          ; == 0 <=> wave 0 and j == 0 : leader
    s_lshl_b32 s44, s3, 2
    s_add_u32 s44, s44, %d
    v_mov_b32 v10, s44               ; own flag column (FLG + 4x)
    """ % (AL[("V", 0)][0] * G, AL[("K", 0)][0] * G, AL[("Q", 0)][0] * G, M.FLG))
    for i in range(16): a("v_mov_b32 v%d, 0x3f803f80" % (WS + i))
    a("s_waitcnt lgkmcnt(0)")
    dg.t(0)
    a.srd(20, 4, 2048 * 2048)
    a("s_mov_b32 s19, 0x20000")
    a.srd(40, 72, 32768 + 8192 + 12288, M.KEY_OFF)
    if not AB & 4:
        a("""
        s_cmp_lg_u32 s3, 0
        s_cbranch_scc1 F_z0
        s_getpc_b64 s[46:47]
        F_pc:
        s_sub_u32 s46, s46, F_pc-%s
        s_subb_u32 s47, s47, 0
        s_and_b32 s44, s31, 7
        s_lshl_b32 s44, s44, 13
        v_lshlrev_b32 v67, 7, v0
        v_add_u32 v67, s44, v67
        v_min_u32 v67, F_codeend-%s-4, v67
        global_load_dword v61, v67, s[46:47]
        s_cmp_lg_u32 s75, 0
        s_cbranch_scc1 F_z0
        s_lshl_b32 s44, s32, 9
        s_add_u32 s44, s44, %d
        s_mov_b32 exec_hi, 0
        buffer_store_dwordx4 v[12:15], v2, s[40:43], s44 offen sc0 sc1
        s_mul_i32 s44, s32, 768
        s_add_u32 s44, s44, 40960
        s_mov_b32 exec_hi, 0xffff
        buffer_store_dwordx4 v[12:15], v2, s[40:43], s44 offen sc0 sc1
        s_mov_b64 exec, -1
        F_z0:
        """ % (name, name, M.CX_REL))
    def rowloads():
        a("s_cmp_lt_u32 s3, 2")
        a("s_mov_b32 s44, %d" % (AL[("S", 1)][0] * G - 8192))
        a("s_cselect_b32 s44, %d, s44" % (AL[("S", 0)][0] * G))
        a("s_lshl_b32 s45, s3, 12")
        a("s_add_u32 s44, s44, s45")
        a("v_add_u32 v4, s44, v4")
        a("v_add_u32 v8, %d, v8" % M.WRL)
        for n in range(4): a("ds_read_b128 %s, v4 offset:%d" % (q4(XS + 4 * n), n * 512))
        a("s_mov_b32 exec_lo, 0x00ff00ff")
        a("s_mov_b32 exec_hi, 0x00ff00ff")
        for n in range(4): a("ds_read_b128 %s, v8 offset:%d" % (q4(WS + 4 * n), n * 512))
        a("s_mov_b64 exec, -1")
        a("s_waitcnt lgkmcnt(0)")
    vis = [0]
    MW = {t: cfg.get("me%d" % t, {13: 2, 14: 2, 15: 2}.get(t, 0)) for t in range(6, 16)}
    NSW = cfg.get("nsw", 0); SWN = cfg.get("swn", 6); SW0 = cfg.get("sw0", 7); SWP = cfg.get("swp", 3); SWD = cfg.get("swd", SWP)
    DE = cfg.get("de", 0)
    NGU = (NSW - DE) * SWN
    WR = [16, 20, 24, 28, 144, 148, 152, 156]
    def dl(j, st):
        a("s_add_u32 s%d, s78, %d" % (st, j * 2048))
        a("buffer_load_dwordx4 %s, v160, s[80:83], s%d offen%s" % (q4(WR[j]), st, NT))
    class Path:
        def __init__(self, nb, visit=False): self.nb = nb; self.visit = visit; self.w = NGU
        def bar(self):
            if cfg.get("diag2") == 5 and self.nb < 16:
                a("s_memrealtime s[92:93]")
            a("s_barrier")
            if cfg.get("diag2") == 5 and self.nb < 16:
                a("s_waitcnt lgkmcnt(0)")
                a("v_writelane_b32 v167, s92, %d" % self.nb)
            for k_ in range(NSW):
                ph = self.nb - SW0 - k_ * SWD
                if 0 <= ph < SWP:
                    lab = a.label("SW")
                    a("s_cmp_lg_u32 s53, %d" % ph)
                    a("s_cbranch_scc1 %s" % lab)
                    a("s_call_b64 s[34:35], F_sw%d" % k_)
                    a("%s:" % lab)
            for _ in range(MW.get(self.nb, 0)):
                j = self.w
                a("s_add_u32 s91, s54, %d" % (((j >> 3) * 32 + (j & 7)) * 7168))
                a("buffer_load_dwordx4 %s, v6, s[16:19], s91 offen%s" % (q4(72 + 4 * j), NT))
                self.w += 1
            self.nb += 1
            if self.visit:
                for _ in range(cfg.get("nlv", 1)):
                    a("; @@VISIT:l:%d@@" % (self.nb * 1000 + vis[0])); vis[0] += 1
        def until(self, n):
            while self.nb < n: self.bar()
    a("; @@PRI:e:0@@")
    Pa = Path(0)
    TG = cfg.get("tg", 10)
    TE = cfg.get("te", 12)
    TM = 16
    def csreads():
        for pc in range(4):
            for ks in range(2):
                for h in range(2):
                    a("ds_read_b64_tr_b16 %s, v%d offset:%d" % (pr(72 + (pc * 2 + ks) * 4 + 2 * h), 62 + pc, ks * 4096 + h * 512))
            if pc == 1: a("s_waitcnt lgkmcnt(4)")
    def colsum1():
        if QF == 0: a("s_cmp_eq_u32 s3, 0")
        else: a("s_bitcmp0_b32 s3, 0")
        a("s_cbranch_scc1 F_cs1")
        csreads()
        a("s_branch F_cs2")
        a("F_cs1:")
        a("v_add_u32 v60, %d, v3" % M.FLG)
        a("s_mov_b32 exec_hi, 0xffff")
        a("ds_write_b32 v60, v12")
        a("s_mov_b64 exec, -1")
        a("F_cs2:")
    def colsumq():
        a("s_cmp_lg_u32 s3, 2")
        a("s_cbranch_scc1 F_cs3")
        csreads()
        a("s_waitcnt lgkmcnt(0)")
        a("F_cs3:")
    def setup2():
        a.srd(24, 72, M.ZB, M.KV_OFF)
        a.srd(48, 70, 256)
        a("s_lshl_b32 s47, s32, 9")
        s_addr(a, 56, 47, M.KEY_OFF + M.CX_REL)
        a("s_lshl_b32 s47, s33, 9")
        s_addr(a, 58, 47, M.KEY_OFF + M.CX_REL + 256)
        for i in range(4): a("v_mov_b32 v%d, 0x3f803f80" % (68 + i))
        a("s_waitcnt lgkmcnt(0)")
    def colsum2():
        for ks in range(2):
            for pc in range(4):
                a(mfma16(104 + 4 * pc, 68, 72 + (pc * 2 + ks) * 4, ks == 0))
        a("""
        v_cmp_eq_u32 vcc, 1, v5
        v_cndmask_b32 v66, v104, v108, vcc
        v_cmp_eq_u32 vcc, 2, v5
        v_cndmask_b32 v66, v66, v112, vcc
        v_cmp_eq_u32 vcc, 3, v5
        v_cndmask_b32 v66, v66, v116, vcc
        """)
    def publish_ready():
        a("""
        s_cmp_lg_u32 s75, 0
        s_cbranch_scc1 F_z4
        s_lshl_b32 s45, s32, 2
        s_add_u32 s44, s70, s45
        s_addc_u32 s45, s71, 0
        s_mov_b32 s46, 1
        s_waitcnt vmcnt(%d)
        s_atomic_add s46, s[44:45], 0
        F_z4:
        """ % 0)
    A0 = 48
    D1, D2, D3 = 120, 124, 128
    def stats0():
        for n in range(4):
            a(mfma16(D1, XS + 4 * n, XS + 4 * n, n == 0))
            a(mfma16(D2, XS + 4 * n, WS + 4 * n, n == 0))
            a(mfma16(D3, WS + 4 * n, WS + 4 * n, n == 0))
    def stats1():
        a("v_and_b32 v52, 3, v0")
        for k in range(1, 4):
            a("v_cmp_eq_u32 vcc, %d, v52" % k)
            for D in (D1, D2, D3): a("v_cndmask_b32 v%d, v%d, v%d, vcc" % (D, D, D + k))
        for pm in ("[1,0,3,2]", "[2,3,0,1]"):
            for D in (D1, D2, D3): a("v_add_f32_dpp v%d, v%d, v%d quad_perm:%s row_mask:0xf bank_mask:0xf" % (D, D, D, pm))
        for dst, D, l0, l1 in ((48, D2, (8, 24), (40, 56)), (49, D1, (0, 20), (40, 60)), (50, D2, (0, 20), (32, 52)), (51, D3, (8, 24), (8, 24))):
            a("v_readlane_b32 s44, v%d, %d" % (D, l0[0]))
            a("v_readlane_b32 s45, v%d, %d" % (D, l0[1]))
            a("v_readlane_b32 s46, v%d, %d" % (D, l1[0]))
            a("v_readlane_b32 s47, v%d, %d" % (D, l1[1]))
            a("v_mov_b32 v%d, s44" % dst)
            a("v_mov_b32 v%d, s45" % (dst + 4))
            a("v_writelane_b32 v%d, s46, 1" % dst)
            a("v_writelane_b32 v%d, s47, 1" % (dst + 4))
    def stats2():
        for k in range(4): a("v_add_f32 v%d, v%d, v%d" % (A0 + k, A0 + k, A0 + 4 + k))
        a("""
        v_mul_f32 v48, 0x3a800000, v48            ; mean
        v_mul_f32 v49, 0x3a800000, v49
        v_fma_f32 v49, -v48, v48, v49             ; var
        v_max_f32 v49, 0, v49
        v_cvt_pk_bf16_f32 v52, v48, v49
        v_lshlrev_b32 v48, 16, v52                ; mean_bf
        v_and_b32 v49, 0xffff0000, v52            ; var_bf
        v_add_f32 v49, 0x%x, v49
        v_cvt_pk_bf16_f32 v49, v49, v49
        v_lshlrev_b32 v49, 16, v49
        v_sqrt_f32 v49, v49
        v_cvt_pk_bf16_f32 v49, v49, v49
        v_lshlrev_b32 v49, 16, v49
        v_rcp_f32 v49, v49                        ; rstd
        v_xor_b32 v48, 0x80000000, v48            ; negmean
        v_fma_f32 v50, v48, v51, v50
        v_mul_f32 v50, v50, v49                   ; r
        v_cvt_pk_bf16_f32 v50, v50, v50
        v_and_b32 v50, 0xffff0000, v50
        v_ashrrev_i32 v51, 31, v50
        v_or_b32 v51, 0x80000000, v51
        v_xor_b32 v50, v50, v51
        v_and_b32 v50, 0xffff0000, v50
        s_sub_u32 s44, 2047, s77
        v_sub_u32 v51, s44, v9
        v_or_b32 v50, v50, v51
        s_lshl_b32 s44, s3, 1
        v_add_u32 v52, s44, v9                    ; row in record
        v_lshlrev_b32 v53, 3, v52
        v_lshlrev_b32 v52, 2, v52
        v_add_u32 v53, %d, v53
        v_add_u32 v52, %d, v52
        s_mov_b64 exec, 3
        ds_write_b64 v53, v[48:49]
        ds_write_b32 v52, v50
        s_mov_b64 exec, -1
        s_waitcnt lgkmcnt(0)
        """ % (EPS5, RECL, RECL + 64))
        dg.t(1)
    def stores():
        a("""
        s_cmp_eq_u32 s3, 0
        s_cbranch_scc1 F_ax0
        s_mul_i32 s44, s33, 768
        s_add_u32 s44, s44, 40960
        s_add_u32 s45, s3, 1
        s_lshr_b32 s45, s45, 1           ; wave 1 -> seg 1, wave 3 -> seg 2
        s_cmp_eq_u32 s3, 2
        s_cselect_b32 s45, 0, s45
        s_lshl_b32 s45, s45, 8
        s_add_u32 s44, s44, s45
        buffer_atomic_add_f32 v66, v3, s[40:43], s44 offen
        s_mul_i32 s44, s2, %d
        s_mul_i32 s45, s3, %d
        s_add_u32 s44, s44, s45
        s_sub_u32 s44, s44, %d
        s_mov_b64 exec, 0x%x
        buffer_store_dwordx4 v[12:15], v2, s[24:27], s44 offen sc0 sc1
        s_mov_b64 exec, -1
        s_branch F_s1
        F_ax0:
        v_add_u32 v60, %d, v3
        ds_read_b32 v60, v60
        s_lshl_b32 s44, s76, 7
        s_mov_b32 exec_hi, 0
        s_waitcnt lgkmcnt(0)
        buffer_store_dword v60, v3, s[40:43], s44 offen sc0 sc1
        s_mov_b64 exec, -1
        F_s1:
        """ % (M.ZPER, M.ZPER // 3, M.ZPER // 3, (1 << (M.ZPER // 48)) - 1, RECL))
    assert M.ZPER % 384 == 0
    SS = cfg.get("ss", 2)
    ev = {}
    def at(t, f): ev.setdefault(t, []).append(f)
    at(0, colsum1)
    at(0, setup2)
    if QF: at(1, colsumq)
    at(SS, rowloads)
    at(SS, stats0)
    at(cfg.get('tp', 0), publish_ready)
    S1 = SS + cfg.get("s1", 1); S2 = S1 + cfg.get("s2", 1)
    at(cfg.get("c2", 1), colsum2)
    at(S1, stats1)
    at(S2, stats2)
    TS = S2 + 1
    def ready1():
        a("s_cmp_lg_u32 s3, 0")
        a("s_cbranch_scc1 F_r1")
        a("buffer_load_dword v11, v59, s[48:51], 0 offen sc0 sc1")
        a("F_r1:")
    def ready2():
        a("s_cmp_lg_u32 s3, 0")
        a("s_cbranch_scc1 F_a0r")
        a("F_a0p:")
        spin_guard(a)
        a("s_waitcnt vmcnt(0)")
        a("v_cmp_eq_u32 vcc, 0, v11")
        a("s_cbranch_vccz F_a0r")
        a("s_sleep 4")
        a("buffer_load_dword v11, v59, s[48:51], 0 offen sc0 sc1")
        a("s_branch F_a0p")
        a("F_a0r:")
    TS = max(TS, cfg.get("ts", 4))
    at(TS - 2, ready1)
    at(TS - 1, ready2)
    at(TS, stores)
    TAR = TS + cfg.get("aw", 1)
    for f in ev.get(-1, []): f()
    for t in range(TAR + 1):
        Pa.bar()
        if AB & 8 and t == TS:
            Pa.until(17)
            a("s_endpgm")
            Pa.nb = t + 1
        for f in ev.get(t, []): f()
        if cfg.get("ev0", 1) <= t < cfg.get("ev0", 1) + 2:
            lab = a.label("EV")
            for w in range(4):
                lab = a.label("EV")
                a("s_cmp_lg_u32 s3, %d" % w)
                a("s_cbranch_scc1 %s" % lab)
                a("; @@VISIT:e:%d@@" % (4 * t + w))
                a("%s:" % lab)
    a("v_mov_b32 v4, %d" % (M.F_Y + 8))
    a("v_mov_b32 v8, 1")
    a("s_lshr_b32 s47, s32, 2")
    a("s_lshl_b32 s47, s47, 11")
    s_addr(a, 54, 47, M.KEY_OFF + M.CX_REL + 384)
    a("s_waitcnt vmcnt(0)")
    a("""
    s_mov_b64 exec, 1
    ds_add_rtn_u32 v9, v4, v8
    s_waitcnt lgkmcnt(0)
    v_readfirstlane_b32 s44, v9
    s_mov_b64 exec, -1
    s_cmp_lg_u32 s44, 3
    s_cbranch_scc1 F_a0s
    s_mov_b32 s74, 1
    s_atomic_add s74, s[54:55], 0
    s_atomic_add s74, s[56:57], 0
    s_atomic_add s74, s[58:59], 0
    F_a0s:
    """)
    Pa.bar()
    a("""
    s_and_b32 s89, s2, 0xdd
    s_bfe_u32 s44, s2, 0x10005
    s_lshl_b32 s44, s44, 1
    s_or_b32 s89, s89, s44
    s_bfe_u32 s44, s2, 0x10001
    s_xor_b32 s44, s44, 1
    s_lshl_b32 s44, s44, 5
    s_or_b32 s89, s89, s44           ; MoE id (>= 224 for the workgroups with slow k,v columns)
    s_and_b32 s36, s89, 3            ; p
    s_bfe_u32 s37, s89, 0x10002      ; mat
    s_lshr_b32 s38, s89, 3           ; cs (valid < 28) ; also ti
    s_cmp_eq_u32 s37, 0
    s_cselect_b32 s16, s62, s64
    s_cselect_b32 s17, s63, s65
    s_cmp_lt_u32 s89, 224
    s_cselect_b32 s18, %d, 0
    v_mul_u32_u24 v6, %d, v5
    v_lshl_add_u32 v6, v7, 4, v6     ; weight voffset
    s_lshl_b32 s44, s36, 2
    s_add_u32 s44, s44, s3
    s_waitcnt lgkmcnt(0)
    s_mul_i32 s54, s44, %d           ; (p*256 + 64x) rows
    s_lshl_b32 s45, s38, 8
    s_add_u32 s54, s54, s45
    s_lshl_b32 s55, s44, 7           ; k byte offset
    """ % (0 if cfg.get("nomoe", 0) & 1 else 1024 * 7168, 8 * 7168, 64 * 7168))
    a("""
    s_and_b32 s39, s89, 7            ; tj
    s_mul_i32 s10, s38, 112
    s_mul_i32 s79, s3, 28
    s_add_u32 s10, s10, s79          ; f0
    s_lshl_b32 s78, s10, 11
    s_lshl_b32 s79, s39, 8
    s_add_u32 s78, s78, s79
    v_mul_u32_u24 v160, 14336, v5
    v_lshl_add_u32 v160, v7, 4, v160
    """)
    a.srd(80, 66, 0 if cfg.get("nomoe", 0) & 2 else 3584 * 2048)
    nb1 = Pa.nb
    assert all(MW[t] == 0 for t in MW if t < nb1)
    if NSW:
        assert SW0 >= nb1 and SW0 + (NSW - 1) * SWD + SWP - 1 <= TE
        a("s_mul_i32 s53, s2, %d" % cfg.get("swh", 37))
        a("s_and_b32 s53, s53, 255")
        a("s_mul_i32 s53, s53, %d" % SWP)
        a("s_lshr_b32 s53, s53, 8")
        if cfg.get("swc") is not None:
            a("s_lshr_b32 s53, s11, 1")
            a("s_add_u32 s53, s53, %d" % cfg["swc"])
            a("s_and_b32 s53, s53, 3")
        a("s_branch F_swx")
        for k_ in range(NSW):
            a("F_sw%d:" % k_)
            if cfg.get("sws"): a("s_sleep %d" % cfg["sws"])
            if DE and k_ == 0:
                for j in range(7): dl(j, 91)
            for j in range((k_ - DE) * SWN, (k_ - DE + 1) * SWN) if k_ >= DE else []:
                a("s_add_u32 s91, s54, %d" % (((j >> 3) * 32 + (j & 7)) * 7168))
                a("buffer_load_dwordx4 %s, v6, s[16:19], s91 offen%s" % (q4(72 + 4 * j), NT))
            a("s_setpc_b64 s[34:35]")
        a("F_swx:")
    if AB & 16:
        Pa.until(17)
        a("s_endpgm")
    def check(Px, tg, sbs, tgt):
        assert Px.nb <= tg + 1
        Px.until(tg + 1)
        for k_, sb in enumerate(sbs): a("s_load_dword s%d, s[%d:%d], 0 glc" % (76 + k_, sb, sb + 1))
        Px.bar()
        a("s_waitcnt lgkmcnt(0)")
        for k_, sb in enumerate(sbs):
            lab = a.label("GC")
            a("s_cmp_ge_u32 s%d, %d" % (76 + k_, tgt))
            a("s_cbranch_scc1 %s" % lab)
            s_poll(a, sb, tgt, 76 + k_, sleep=3)
            a("%s:" % lab)
    a("s_cmp_eq_u32 s3, 2")
    a("s_cbranch_scc1 F_ax2")
    a("s_cmp_eq_u32 s3, 1")
    a("s_cbranch_scc1 F_ax1")
    a("s_cmp_eq_u32 s3, 0")
    a("s_cbranch_scc1 F_ax0b")
    Pv = Path(nb1, visit=True)
    if cfg.get("tw", 0) == 1:
        Pv.until(cfg.get("twt", TE) + 1)
        a.srd(84, 8, 1024 * 2048)
        a("""
        v_lshrrev_b32 v32, 3, v0
        v_and_b32 v33, 7, v0
        v_lshlrev_b32 v33, 7, v33
        v_lshl_add_u32 v32, v32, 11, v33
        s_lshl_b32 s47, s31, 16
        s_lshr_b32 s44, s30, 2
        s_lshl_b32 s44, s44, 10
        s_add_u32 s47, s47, s44
        """)
        if cfg.get("tes", 4): a("s_sleep %d" % cfg.get("tes", 4))
        for i in range(4):
            a("buffer_load_dword v%d, v32, s[84:87], s47 offen" % (60 + i))
            a("s_add_u32 s47, s47, 16384")
    Pv.until(14)
    Pv.visit = False
    check(Pv, 13, [56], M.GO)
    fset(10, 4, 1, off=M.F_SC - M.FLG)
    Pv.until(TM)
    a("s_branch F_aj")
    a("; @@PRI:e:3@@")
    a("F_ax1:")
    P1 = Path(nb1, visit=True)
    P1.until(TG)
    P1.visit = False
    a("s_mul_i32 s44, s33, 768")
    a("s_add_u32 s44, s44, 40960")
    check(P1, TG, [58], 16)
    P1.until(TE + 1)
    if cfg.get("tes", 4): a("s_sleep %d" % cfg.get("tes", 4))
    a("s_mov_b32 m0, %d" % M.CL)
    a("s_mov_b32 exec_hi, 0xffff")
    a("buffer_load_dwordx4 v2, s[40:43], s44 offen sc0 sc1 lds")
    a("s_mov_b64 exec, -1")
    w0 = P1.w
    for _ in range(cfg.get("gw", 2)): P1.bar()
    a("s_waitcnt vmcnt(%d)" % (P1.w - w0))
    fset(10, 4, 1, off=M.F_SC - M.FLG)
    assert P1.nb <= TM
    P1.until(TM)
    a("s_branch F_aj")
    a("; @@STUB@@")
    a("F_ax0b:")
    P0 = Path(nb1, visit=True)
    P0.until(TG)
    P0.visit = False
    a("s_lshl_b32 s47, s28, 9")
    s_addr(a, 58, 47, M.KEY_OFF + M.CX_REL)
    a("""
    s_lshl_b32 s44, s32, 11
    s_lshl_b32 s45, s28, 11
    v_lshrrev_b32 v11, 2, v0
    v_and_b32 v9, 3, v0
    v_lshlrev_b32 v9, 4, v9
    v_lshl_add_u32 v11, v11, 7, v9
    """)
    check(P0, TG, [56, 58], 16)
    P0.until(TE + 1)
    if cfg.get("tes", 4): a("s_sleep %d" % cfg.get("tes", 4))
    a("""
    buffer_load_dwordx4 v[32:35], v11, s[40:43], s44 offen sc0 sc1
    buffer_load_dwordx4 v[36:39], v11, s[40:43], s45 offen sc0 sc1
    v_lshlrev_b32 v9, 3, v0
    v_add_u32 v9, %d, v9
    s_mov_b32 s44, 0x%x
    """ % (M.NML, LOG2E))
    w0 = P0.w
    for _ in range(cfg.get("gw", 2)): P0.bar()
    a("s_waitcnt vmcnt(%d)" % (P0.w - w0))
    a("""
    v_swap_b32 v33, v34
    v_swap_b32 v37, v38
    v_mul_f32 v40, s44, v34
    v_mul_f32 v41, s44, v35
    ds_write_b64 v9, v[32:33]
    ds_write_b64 v9, v[40:41] offset:1024
    ds_write_b64 v9, v[36:37] offset:1536
    ds_write_b64 v9, v[38:39] offset:2048
    """)
    fset(10, 4, 1, off=M.F_SC - M.FLG)
    assert P0.nb <= TM
    P0.until(TM)
    a("s_branch F_aj")
    a("; @@PRI:-:0@@")
    a("F_ax2:")
    a("s_cmp_lg_u32 s2, %d" % cfg.get("selwg", 6))
    a("s_cbranch_scc1 F_a2n")
    def BAR():
        lab = a.label("DB")
        a("s_cmp_ge_u32 s74, 17")
        a("s_cbranch_scc1 %s" % lab)
        a("s_barrier")
        a("s_add_u32 s74, s74, 1")
        a("%s:" % lab)
    a("s_waitcnt lgkmcnt(0)")
    a("s_mov_b32 s74, %d" % nb1)
    a("""
    v_lshrrev_b32 v11, 1, v0
    v_and_b32 v9, 1, v0
    v_lshlrev_b32 v9, 4, v9
    v_lshl_add_u32 v11, v11, 7, v9   ; keys voffset
    v_lshlrev_b32 v9, 9, v0
    v_mov_b32 v8, %d
    F_a2l:
    """ % M.GO)
    spin_guard(a)
    for k in range(4): a("s_load_dword s%d, s[40:41], 0x%x glc" % (60 + k, M.CX_REL + 384 + k * 2048))
    a("""
    s_waitcnt lgkmcnt(0)
    s_add_u32 s60, s60, s61
    s_add_u32 s62, s62, s63
    s_add_u32 s60, s60, s62
    s_cmp_ge_u32 s60, 256
    s_cbranch_scc1 F_a2t
    """)
    BAR()
    a("s_branch F_a2l")
    a("F_a2t:")
    dg.t(6)
    KEYS = 16
    for i in range(8):
        a("s_movk_i32 s44, %d" % (i * 4096))
        a("buffer_load_dwordx4 %s, v11, s[40:43], s44 offen offset:64 sc0 sc1" % q4(KEYS + 4 * i))
    a("""
    s_mov_b32 s44, %d
    s_mov_b64 exec, 0xffff
    buffer_atomic_add v8, v9, s[40:43], s44 offen
    s_mov_b64 exec, -1
    """ % M.CX_REL)
    BAR()
    a("s_waitcnt vmcnt(1)")
    a("v_max3_u32 v48, v%d, v%d, v%d" % (KEYS, KEYS + 1, KEYS + 2))
    a("v_med3_u32 v49, v%d, v%d, v%d" % (KEYS, KEYS + 1, KEYS + 2))
    a("v_min3_u32 v50, v%d, v%d, v%d" % (KEYS, KEYS + 1, KEYS + 2))
    for i in range(3, 32):
        a("v_med3_u32 v50, v49, v50, v%d" % (KEYS + i))
        a("v_med3_u32 v49, v48, v49, v%d" % (KEYS + i))
        a("v_max_u32 v48, v48, v%d" % (KEYS + i))
    BAR()
    a("s_mov_b32 s53, 0")
    for rnd in range(8):
        if rnd:
            a("v_subrev_u32 v48, s52, v48")
            a("v_subrev_u32 v49, s52, v49")
        a("v_max_u32 v4, v48, v49")
        wave_reduce(a, "v_max_u32", 4, 52)
        a("s_add_u32 s53, s53, s52")
        a("v_writelane_b32 v13, s53, %d" % rnd)
        if rnd == cfg.get('rb', 9): BAR()
    a("v_cmp_lt_u32 vcc, s53, v50")
    a("s_cbranch_vccz F_a2k")
    a("s_mov_b32 s53, 0")
    a("s_mov_b32 s52, 0")
    a("s_mov_b32 s64, 0")
    a("F_a2f:")
    for i in range(32): a("v_subrev_u32 v%d, s52, v%d" % (KEYS + i, KEYS + i))
    a("v_max3_u32 v4, v%d, v%d, v%d" % (KEYS, KEYS + 1, KEYS + 2))
    a("v_max3_u32 v12, v%d, v%d, v%d" % (KEYS + 3, KEYS + 4, KEYS + 5))
    i = 6; tog = 0
    while i < 32:
        r_ = (4, 12)[tog]
        a("v_max3_u32 v%d, v%d, v%d, v%d" % (r_, r_, KEYS + i, KEYS + i + 1))
        i += 2; tog ^= 1
    a("v_max_u32 v4, v4, v12")
    wave_reduce(a, "v_max_u32", 4, 52)
    a("s_add_u32 s53, s53, s52")
    a("s_mov_b32 m0, s64")
    a("v_writelane_b32 v13, s53, m0")
    BAR()
    a("s_add_u32 s64, s64, 1")
    a("s_cmp_lt_u32 s64, 8")
    a("s_cbranch_scc1 F_a2f")
    a("F_a2k:")
    a("""
    v_and_b32 v4, 7, v0
    v_lshlrev_b32 v4, 2, v4
    ds_bpermute_b32 v12, v4, v13
    v_lshrrev_b32 v9, 3, v0
    v_lshl_add_u32 v4, v9, 9, v4
    s_mov_b32 s44, %d
    s_mov_b32 s45, %d
    s_waitcnt lgkmcnt(0)
    v_or_b32 v12, 0x8000, v12
    buffer_store_dword v12, v4, s[40:43], s44 offen sc0 sc1
    buffer_store_dword v12, v4, s[40:43], s45 offen sc0 sc1
    """ % (M.CX_REL + 128, M.CX_REL + 128 + 4096))
    dg.t(8)
    a("F_a2m:")
    BAR()
    a("s_cmp_lt_u32 s74, 17")
    a("s_cbranch_scc1 F_a2m")
    for j in range(7 if DE else 0): dl(j, 91)
    for j in range(NGU + sum(MW.values())):
        a("s_add_u32 s91, s54, %d" % (((j >> 3) * 32 + (j & 7)) * 7168))
        a("buffer_load_dwordx4 %s, v6, s[16:19], s91 offen%s" % (q4(72 + 4 * j), NT))
    a("s_branch F_aj2")
    a("; @@PRI:e:4@@")
    a("; @@STUB@@")
    a("; @@PRI:l:3:DENS@@")
    a("F_a2n:")
    def selwrite(b):
        for t in range(8):
            a("s_andn2_b32 s%d, s%d, 0x8000" % (b + t, b + t))
            a("v_writelane_b32 v12, s%d, %d" % (b + t, t))
        a("v_add_u32 v4, %d, v3" % M.SELL)
        a("s_mov_b64 exec, 0xff")
        a("ds_write_b32 v4, v12")
        a("s_mov_b64 exec, -1")
        fset(10, 4, 1, off=M.F_SC - M.FLG)
    def seltest(b):
        a("s_waitcnt lgkmcnt(0)")
        a("s_and_b64 s[44:45], s[%d:%d], s[%d:%d]" % (b, b + 1, b + 2, b + 3))
        a("s_and_b64 s[44:45], s[44:45], s[%d:%d]" % (b + 4, b + 5))
        a("s_and_b64 s[44:45], s[44:45], s[%d:%d]" % (b + 6, b + 7))
        a("s_and_b32 s44, s44, s45")
        a("s_bitcmp1_b32 s44, 15")
    P2 = Path(nb1, visit=True)
    P2.until(TM - 2)
    P2.visit = False
    a("s_load_dwordx8 s[60:67], s[56:57], 128 glc")
    P2.bar()
    seltest(60)
    a("s_cbranch_scc0 F_a2q")
    selwrite(60)
    a("s_waitcnt lgkmcnt(0)")
    a("s_mov_b32 s88, 1")
    a("F_a2q:")
    P2.bar()
    a("F_aj:")
    a("s_mov_b32 s74, 0")
    a("F_aj2:")
    a("""
    v_and_b32 v13, 3, v0
    v_lshlrev_b32 v13, 2, v13
    v_add_u32 v13, %d, v13           ; 4 flag words base
    """ % M.FLG)
    def mso(w): return MS[w >> 1] - MS[0] + (w & 1) * 4096
    a("s_cmp_lt_u32 s3, 2")
    a("s_mov_b32 s75, %d" % MS[1])
    a("s_cselect_b32 s75, %d, s75" % MS[0])
    a("s_and_b32 s44, s3, 1")
    a("s_lshl_b32 s44, s44, 12")
    a("s_add_u32 s75, s75, s44")
    a.srd(12, 72, M.PRE_BYTES, M.PRE_OFF)
    WB = 72
    a("s_mov_b32 s47, s10")
    wn = [NGU + sum(MW.values())]
    assert wn[0] <= 16
    def wl(n):
        for _ in range(n):
            j = wn[0]
            if j < 16:
                a("s_add_u32 s45, s54, %d" % (((j >> 3) * 32 + (j & 7)) * 7168))
                a("buffer_load_dwordx4 %s, v6, s[16:19], s45 offen%s" % (q4(WB + 4 * j), NT))
            elif j < 23:
                a("s_add_u32 s45, s78, %d" % ((j - 16) * 2048))
                a("buffer_load_dwordx4 %s, v160, s[80:83], s45 offen%s" % (q4(WR[j - 16]), NT))
            else: return
            wn[0] += 1
    def xloads():
        a("""
        v_and_b32 v4, 7, v0
        v_lshlrev_b32 v4, 2, v4
        v_add_u32 v4, %d, v4
        ds_read_b32 v4, v4
        s_waitcnt lgkmcnt(0)
        v_and_b32 v4, 0x7ff, v4
        v_sub_u32 v4, 2047, v4
        v_and_b32 v11, 7, v4
        v_lshrrev_b32 v9, 3, v4
        v_lshlrev_b32 v9, 7, v9
        v_lshl_add_u32 v9, v11, 3, v9
        v_lshlrev_b32 v4, 11, v4
        v_lshl_add_u32 v4, v5, 4, v4
        buffer_load_dwordx4 v[64:67], v4, s[20:23], s55 offen
        buffer_load_dwordx4 v[68:71], v4, s[20:23], s55 offen offset:64
        buffer_load_dwordx2 v[14:15], v9, s[40:43], 0 offen sc0 sc1
        """ % M.SELL)
    XEARLY = cfg.get("xp", 11) <= wn[0]
    if XEARLY:
        a("v_mov_b32 v4, %d" % (M.F_SC + 8))
        a("ds_read_b32 v9, v4")
        a("s_waitcnt lgkmcnt(0)")
        a("v_readfirstlane_b32 s79, v9")
        a("s_cmp_eq_u32 s79, 0")
        a("s_cbranch_scc1 F_xe")
        xloads()
        a("F_xe:")
    for t in range(TM, 17):
        lab = a.label("JB")
        a("s_cmp_lg_u32 s74, 0")
        a("s_cbranch_scc1 %s" % lab)
        a("s_barrier")
        a("%s:" % lab)
    dg.t(2)
    if cfg.get("p1only"):
        if cfg.get("diag2") == 5:
            a("s_cmp_lg_u32 s3, %d" % cfg.get("dw", 0))
            a("s_cbranch_scc1 F_end")
            env["dc"].out(2)
        a("s_endpgm")
    a("s_setprio %d" % cfg.get("aprio", 1))
    def mgate2(c):
        if c >= 300: flag_wait(a, 12, 13, c - 300, sleep=1, off=M.F_OA - M.FLG)
        else:
            a("v_and_b32 v8, 0xfffffff7, v13")
            flag_wait(a, 12, 8, c - 200, sleep=1, off=M.F_KV - M.FLG)
    def mgate(c):
        if c >= 300: flag_wait(a, 9, 13, c - 300, sleep=2, off=M.F_OA - M.FLG)
        elif c >= 200: mgate2(c)
        elif c >= 100: flag_wait(a, 9, 13, c - 100, sleep=2, off=M.F_KX - M.FLG)
        elif c: flag_wait(a, 9, 13, c, sleep=2)
    def xsel():
        dg.t(9)
        if XEARLY:
            a("s_cmp_lg_u32 s79, 0")
            a("s_cbranch_scc1 F_xd")
        a("s_cmp_lg_u32 s88, 2")
        a("s_cbranch_scc1 F_se")
        a("F_sc:")
        spin_guard(a)
        a("s_load_dwordx8 s[60:67], s[56:57], 128 glc")
        seltest(60)
        a("s_cbranch_scc1 F_sd")
        a("s_sleep 4")
        a("s_branch F_sc")
        a("F_sd:")
        selwrite(60)
        a("F_se:")
        a("v_mov_b32 v4, %d" % (M.F_SC + 8))
        flag_wait(a, 9, 4, 1, sleep=1)
        dg.t(10)
        xloads()
        a("F_xd:")
    CAP = cfg.get("cap", 7); CAP2 = cfg.get("cap2", CAP); CJ = cfg.get("capj", 99)
    XP = cfg.get("xp", 11); ND = cfg.get("nd", 16)
    def light():
        lab = a.label("TL")
        a("ds_read_b32 v9, v13 offset:%d" % (M.F_KV - M.FLG))
        a("s_waitcnt lgkmcnt(0)")
        a("v_cmp_ne_u32 vcc, 0, v9")
        a("s_cbranch_vccz %s" % lab)
        flag_wait(a, 9, 13, cfg.get("lgt", 1), sleep=2, off=M.F_OA - M.FLG)
        a("%s:" % lab)
    wx = None
    log = ["w"] * wn[0]
    def stream(upto):
        nonlocal wx
        while wn[0] < upto:
            j = wn[0]
            if wx is None and j >= XP:
                xsel(); wx = j; log.extend(["x"] * 3)
            if cfg.get("mg%d" % j): mgate(cfg["mg%d" % j])
            cap = CAP if j < CJ else CAP2
            n_ = 0; w_ = 0
            for tg in reversed(log):
                if tg == "w":
                    if w_ == cap - 1: break
                    w_ += 1
                n_ += 1
            if n_ < len(log): a("s_waitcnt vmcnt(%d)" % n_)
            if j >= cfg.get("lj", 99): light()
            wl(1); log.append("w")
            if wn[0] == cfg.get("mwf", 16): fset(10, 4, 1, off=M.F_MW - M.FLG)
    if XEARLY:
        xsel(); wx = wn[0]; log.extend(["x"] * 3)
    stream(ND)
    a("s_mov_b32 s52, 0x05040100")
    a("s_mov_b32 s53, 0x07060302")
    if cfg.get("nochain"): a("s_endpgm")
    a("s_setprio %d" % cfg.get("aprio2", 2))
    a("s_cmp_ge_u32 s89, 224")
    a("s_cbranch_scc1 F_adown")
    a("s_waitcnt vmcnt(%d)" % (wn[0] - wx))
    dg.t(11)
    for i in range(8):
        a("v_lshlrev_b32 v%d, 16, v%d" % (34 + 2 * i, 64 + i))
        a("v_and_b32 v%d, 0xffff0000, v%d" % (35 + 2 * i, 64 + i))
    for i in range(16): a("v_add_f32 v%d, v%d, v14" % (34 + i, 34 + i))
    for i in range(8): a("v_cvt_pk_bf16_f32 v%d, v%d, v%d" % (64 + i, 34 + 2 * i, 35 + 2 * i))
    for i in range(8):
        a("v_lshlrev_b32 v%d, 16, v%d" % (34 + 2 * i, 64 + i))
        a("v_and_b32 v%d, 0xffff0000, v%d" % (35 + 2 * i, 64 + i))
    for i in range(16): a("v_mul_f32 v%d, v%d, v15" % (34 + i, 34 + i))
    for i in range(8): a("v_cvt_pk_bf16_f32 v%d, v%d, v%d" % (64 + i, 34 + 2 * i, 35 + 2 * i))
    AC = 32; PB = 136
    for s_ in range(2):
        a("s_waitcnt vmcnt(%d)" % min(wn[0] - wx, wn[0] - 8 * (s_ + 1)))
        if s_ == 1: dg.t(3)
        b = WB + 32 * s_
        for jj in range(8):
            tm = PB + 4 * (jj & 1)
            for pp in range(4):
                a("v_perm_b32 v%d, v%d, v%d, s%d" % (tm + pp, b + 4 * (2 * pp + 1) + (jj >> 1), b + 4 * (2 * pp) + (jj >> 1), 52 + (jj & 1)))
            a(mfma16(AC + 4 * jj, 64 + 4 * s_, tm, s_ == 0))
    dg.t(15)
    flag_wait(a, 9, 13, P["ms_at"], sleep=1)
    a("""
    v_xor_b32 v4, v7, v5
    v_lshlrev_b32 v4, 4, v4
    v_lshl_add_u32 v4, v5, 8, v4
    v_add_u32 v4, s75, v4
    """)
    for jj in range(1, 8): a("v_xor_b32 v%d, %d, v4" % (72 + jj, jj * 32))
    a("s_mov_b32 exec_hi, 0")
    for jj in range(8):
        a("ds_write_b128 v%d, %s offset:%d" % (72 + jj if jj else 4, q4(AC + 4 * jj), jj * 512))
    a("s_mov_b64 exec, -1")
    fset(10, 4, 1, off=M.F_MF1 - M.FLG)
    dg.t(1)
    flag_wait(a, 12, 13, 1, sleep=1, off=M.F_MF1 - M.FLG)
    dg.t(9)
    a("""
    s_lshl_b32 s44, s3, 2
    v_add_u32 v4, s44, v5            ; c = 4x + (l>>4)
    v_xor_b32 v4, v4, v7             ; ^ (2jj + q)
    v_lshlrev_b32 v4, 4, v4
    v_lshl_add_u32 v4, v7, 8, v4
    v_add_u32 v4, %d, v4
    s_lshl_b32 s44, s3, 10
    s_lshl_b32 s77, s36, 1
    s_add_u32 s77, s77, s37
    s_mul_i32 s77, s77, %d
    s_lshl_b32 s46, s38, 12
    s_add_u32 s77, s77, s46
    s_add_u32 s77, s77, s44          ; own pre piece offset
    s_lshl_b32 s46, s38, 9
    v_mov_b32 v9, %d
    v_mov_b32 v11, 1
    """ % (MS[0], 3584 * 32, M.F_Y + 12))
    s_addr(a, 56, 46, M.KV_OFF + C_PRE)
    for w in range(4):
        a("ds_read_b128 %s, v4 offset:%d" % (q4(72 + 4 * w), mso(w)))
    a("s_waitcnt lgkmcnt(0)")
    for i in range(4):
        a("v_add_f32 v%d, v%d, v%d" % (72 + i, 72 + i, 76 + i))
        a("v_add_f32 v%d, v%d, v%d" % (80 + i, 80 + i, 84 + i))
    for i in range(4):
        a("v_add_f32 v%d, v%d, v%d" % (72 + i, 72 + i, 80 + i))
    if cfg.get("pg"): mgate2(cfg["pg"])
    a("buffer_store_dwordx4 v[72:75], v2, s[12:15], s77 offen sc0 sc1")
    dg.t(12)
    fset(10, 4, 2, off=M.F_MF1 - M.FLG)
    a("s_waitcnt vmcnt(0)")
    a("""
    s_mov_b64 exec, 1
    ds_add_rtn_u32 v9, v9, v11
    s_waitcnt lgkmcnt(0)
    v_readfirstlane_b32 s44, v9
    s_mov_b64 exec, -1
    s_cmp_lg_u32 s44, 3
    s_cbranch_scc1 F_ad2
    """)
    s_signal(a, 56, 44)
    a("s_branch F_ad2")
    a("F_adown:")
    flag_wait(a, 9, 13, P["ms_at"], sleep=1)
    fset(10, 4, 2, off=M.F_MF1 - M.FLG)
    a("F_ad2:")
    dg.t(4)
    a("s_setprio %d" % cfg.get("aprio3", 3))
    log[:] = []
    if not DE: stream(23)
    a("""
    v_min_u32 v4, 55, v0
    v_lshlrev_b32 v4, 4, v4
    s_lshl_b32 s38, s47, 5
    s_and_b32 s46, s39, 3
    s_lshr_b32 s44, s47, 7
    s_lshl_b32 s44, s44, 2
    s_add_u32 s44, s44, s46
    s_lshl_b32 s44, s44, 7
    s_add_u32 s45, s47, 111
    s_lshr_b32 s45, s45, 7
    s_lshl_b32 s45, s45, 2
    s_add_u32 s45, s45, s46
    s_lshl_b32 s45, s45, 7
    s_waitcnt lgkmcnt(0)
    """)
    s_addr(a, 56, 44, M.KV_OFF + C_PRE)
    s_addr(a, 58, 45, M.KV_OFF + C_PRE)
    PA = 32; WD = 72
    for i in range(4): a("v_mov_b32 v%d, 0" % (WR[7] + i))
    a("s_mov_b32 s48, 0x%x" % (LOG2E ^ 0x80000000))
    flag_wait(a, 12, 13, 2, sleep=1, off=M.F_MF1 - M.FLG)
    a("""
    s_mov_b32 s44, s75
    v_lshlrev_b32 v9, 3, v0
    v_add_u32 v9, s44, v9
    ds_write_b64 v9, v[%d:%d]
    v_lshrrev_b32 v11, 1, v0         ; f
    v_mul_u32_u24 v9, 37, v11
    v_lshrrev_b32 v9, 8, v9
    v_add_u32 v11, v11, v9
    v_lshlrev_b32 v11, 1, v11
    v_and_b32 v9, 1, v0
    v_lshl_add_u32 v11, v9, 8, v11
    v_add_u32 v11, s44, v11          ; h write addr
    v_and_b32 v9, 7, v0
    v_lshlrev_b32 v9, 6, v9
    v_lshl_add_u32 v9, v5, 4, v9
    v_add_u32 v9, s44, v9            ; h read addr
    """ % (WR[7], WR[7] + 1))
    a("s_cmp_lg_u32 s3, 0")
    a("s_cbranch_scc1 F_pp")
    s_poll(a, 56, 8, 76, sleep=cfg.get("psleep", 2))
    s_poll(a, 58, 8, 76, sleep=cfg.get("psleep", 2))
    fset(10, 12, 3, off=M.F_MF1 - M.FLG)
    a("F_pp:")
    a("v_mov_b32 v8, %d" % M.F_MF1)
    flag_wait(a, 12, 8, 3, sleep=1)
    if cfg.get("lg"): mgate2(cfg["lg"])
    dg.t(13)
    for pm in range(8):
        a("s_add_u32 s45, s38, %d" % (pm * 3584 * 32))
        a("buffer_load_dwordx4 %s, v4, s[12:15], s45 offen sc0 sc1" % q4(PA + 4 * pm))
    a("s_waitcnt vmcnt(0)")
    dg.t(5)
    for mat in range(2):
        for i in range(4):
            r0 = PA + 4 * mat + i
            a("v_add_f32 v%d, v%d, v%d" % (r0, r0, r0 + 8))
            a("v_add_f32 v%d, v%d, v%d" % (r0 + 16, r0 + 16, r0 + 24))
        for i in range(4):
            r0 = PA + 4 * mat + i
            a("v_add_f32 v%d, v%d, v%d" % (r0, r0, r0 + 16))
    Gr, U, E = PA, PA + 4, PA + 8
    n = 4
    for i in range(n): a("v_cvt_pk_bf16_f32 v%d, v%d, v%d" % (E + i, Gr + i, U + i))
    for i in range(n):
        a("v_lshlrev_b32 v%d, 16, v%d" % (Gr + i, E + i))
        a("v_and_b32 v%d, 0xffff0000, v%d" % (U + i, E + i))
    for i in range(n): a("v_mul_f32 v%d, s48, v%d" % (E + i, Gr + i))
    for i in range(n): a("v_exp_f32 v%d, v%d" % (E + i, E + i))
    for i in range(n): a("v_add_f32 v%d, 1.0, v%d" % (E + i, E + i))
    for i in range(n): a("v_rcp_f32 v%d, v%d" % (E + i, E + i))
    for i in range(n): a("v_mul_f32 v%d, v%d, v%d" % (Gr + i, Gr + i, E + i))
    for i in range(n): a("v_cvt_pk_bf16_f32 v%d, v%d, v%d" % (Gr + i, Gr + i, Gr + i))
    for i in range(n): a("v_lshlrev_b32 v%d, 16, v%d" % (Gr + i, Gr + i))
    for i in range(n): a("v_mul_f32 v%d, v%d, v%d" % (Gr + i, Gr + i, U + i))
    for i in range(n): a("v_cvt_pk_bf16_f32 v%d, v%d, v%d" % (Gr + i, Gr + i, Gr + i))
    a("v_cmp_gt_u32 vcc, 56, v0")
    a("s_and_saveexec_b64 s[44:45], vcc")
    for i in range(n): a("ds_write_b16 v11, v%d offset:%d" % (Gr + i, i * 64))
    a("s_mov_b64 exec, s[44:45]")
    H = 64
    a("ds_read_b128 %s, v9" % q4(H))
    a("s_waitcnt lgkmcnt(0)")
    AC = 104
    for jj in range(8):
        tm = PB + 4 * (jj & 1)
        for pp in range(4):
            a("v_perm_b32 v%d, v%d, v%d, s%d" % (tm + pp, WR[2 * pp + 1] + (jj >> 1), WR[2 * pp] + (jj >> 1), 52 + (jj & 1)))
        a(mfma16(AC + 4 * jj, H, tm, True))
    a("""
    s_mov_b32 s44, s75
    v_and_b32 v4, 1, v5
    v_lshlrev_b32 v4, 11, v4
    v_lshl_add_u32 v4, v7, 5, v4
    v_lshrrev_b32 v8, 1, v5
    v_lshl_add_u32 v4, v8, 4, v4
    v_add_u32 v4, s44, v4
    v_cmp_gt_u32 vcc, 32, v0
    """)
    for r in range(4):
        for j in range(4):
            a("v_cndmask_b32 v%d, v%d, v%d, vcc" % (WD + 4 * r + j, AC + 4 * (j + 4) + r, AC + 4 * j + r))
        a("ds_write_b128 v4, %s offset:%d" % (q4(WD + 4 * r), r * 512))
    fset(10, 4, 1, off=M.F_MF2 - M.FLG)
    flag_wait(a, 12, 13, 1, sleep=1, off=M.F_MF2 - M.FLG)
    a("s_lshl_b32 s44, s3, 10")
    a("s_add_u32 s44, s44, %d" % MS[0])
    a("v_add_u32 v4, s44, v3")
    for w in range(4):
        for i in range(4):
            a("ds_read_b32 v%d, v4 offset:%d" % (PA + 4 * w + i, mso(w) + i * 256))
    a("""
    s_lshl_b32 s44, s3, 13
    s_lshl_b32 s45, s39, 9
    s_add_u32 s44, s44, s45
    s_add_u32 s44, s44, %d
    s_add_u32 s45, s44, 4096
    s_lshl_b32 s46, s39, 9
    s_waitcnt lgkmcnt(0)
    """ % M.Y_REL)
    s_addr(a, 56, 46, M.KV_OFF + M.R_Y)
    for i in range(4):
        a("v_add_f32 v%d, v%d, v%d" % (PA + i, PA + i, PA + 4 + i))
        a("v_add_f32 v%d, v%d, v%d" % (PA + 8 + i, PA + 8 + i, PA + 12 + i))
    for i in range(4):
        a("v_add_f32 v%d, v%d, v%d" % (PA + i, PA + i, PA + 8 + i))
        a("buffer_atomic_add_f32 v%d, v3, s[24:27], s%d offen offset:%d" % (PA + i, 44 + (i >> 1), (i & 1) * 256))
    dg.t(14)
    a("""
    v_mov_b32 v4, %d
    v_mov_b32 v8, 1
    s_waitcnt vmcnt(0)
    s_mov_b64 exec, 1
    ds_add_rtn_u32 v9, v4, v8
    s_waitcnt lgkmcnt(0)
    v_readfirstlane_b32 s44, v9
    s_mov_b64 exec, -1
    s_cmp_lg_u32 s44, 3
    s_cbranch_scc1 F_ye
    s_mov_b32 s44, 1
    s_atomic_add s44, s[56:57], 0
    s_atomic_add s44, s[56:57], 0x80
    s_atomic_add s44, s[56:57], 0x100
    s_atomic_add s44, s[56:57], 0x180
    F_ye:
    """ % (M.F_Y + 4))
    dg.t(7)
    if dg.on:
        a('s_cmp_lg_u32 s3, 2')
        a('s_cbranch_scc1 F_end')
        dg.out(2)
    a("s_endpgm")
```

```python
from common import *


def compute(a, env):
    import g4 as M
    cfg = env["cfg"]; P = env["P"]; AL = env["AL"]; QO = env["QO"]; NST = env["NST"]
    dg = env["dg"]; dc = env["dc"]; fset = env["fset"]; KX = env["KX"]
    OPA = 12; OPB = 44; TB = 68; KAC = 100; VAC = 132
    FL = M.FLG
    def acc(kind, nb, rb): return {1: KAC, 2: VAC}[kind] + nb * 16 + rb * 4
    a('s_setprio %d' % cfg.get('cprio', 2))
    a("""
    s_lshr_b32 s36, s3, 1            ; wr
    s_and_b32 s37, s3, 1             ; wh
    v_and_b32 v1, 15, v0             ; row16
    v_lshrrev_b32 v2, 4, v0          ; q
    v_lshrrev_b32 v3, 1, v1          ; g(row)
    v_xor_b32 v3, v3, v2
    v_lshlrev_b32 v3, 4, v3
    v_lshlrev_b32 v1, 7, v1
    s_lshl_b32 s38, s36, 13
    v_add3_u32 v4, v1, v3, s38       ; addrA ks=0 window 0
    v_xor_b32 v5, 64, v4             ; ks=1
    v_add_u32 v6, 0x10000, v4
    v_add_u32 v7, 0x10000, v5
    v_bfe_u32 v1, v0, 2, 2           ; r
    v_lshl_add_u32 v3, v2, 3, v1     ; row = 8q + r
    v_lshrrev_b32 v1, 1, v1
    v_and_b32 v2, 1, v2
    v_lshl_add_u32 v1, v2, 1, v1     ; f(row)
    s_lshl_b32 s38, s37, 1
    s_add_u32 s38, s38, s36          ; piece of nb'=0 : 2wh + wr
    v_xor_b32 v1, s38, v1
    v_lshlrev_b32 v1, 5, v1
    v_lshl_add_u32 v1, v3, 7, v1
    v_and_b32 v2, 3, v0
    v_lshl_add_u32 v1, v2, 3, v1
    v_add_u32 v8, 0x10000, v1        ; addrB nb'=0 window 64K
    v_xor_b32 v9, 32, v8             ; nb'=1
    v_add_u32 v10, 0x8000, v8        ; window 96K
    v_add_u32 v11, 0x8000, v9
    s_mov_b32 s40, 0x%x              ; 2^-60 / log2e
    s_mov_b32 s41, s40
    s_mov_b32 s74, 0x%x              ; eps
    s_mov_b32 s75, s74
    s_mov_b32 s76, 0x%x              ; 2^60
    s_mov_b32 s77, s76
    v_and_b32 v164, 0x30, v0
    s_lshl_b32 s42, s36, 8
    s_add_u32 s42, s42, %d
    v_add_u32 v164, s42, v164        ; row table addr for (wr, q): + rb*64
    v_and_b32 v165, 15, v0
    v_lshlrev_b32 v165, 2, v165
    s_lshl_b32 s42, s38, 6
    s_add_u32 s42, s42, %d
    v_add_u32 v165, s42, v165        ; CL addr for nb'=0 ; xor 64 for nb'=1
    s_lshl_b32 s42, s3, 2
    s_add_u32 s42, s42, %d
    v_mov_b32 v3, s42                ; own flag column (FLG + 4w)
    v_lshlrev_b32 v1, 2, v2
    v_add_u32 v1, %d, v1             ; 4-word flag read base
    v_xor_b32 v2, 64, v165
    s_lshl_b32 s44, s33, 1
    s_add_u32 s44, s44, s37          ; kv head
    s_mul_i32 s45, s44, 4224
    s_mul_i32 s46, s36, 3072
    s_add_u32 s46, s46, s45          ; tile (wr*2 + wr) for db'=0
    s_lshl_b32 s47, s36, 10
    s_add_u32 s47, s47, 1024
    s_add_u32 s47, s47, s45          ; tile (wr*2 + (1^wr)) for db'=1
    s_lshl_b32 s48, s36, 6
    s_add_u32 s48, s48, 4096
    s_add_u32 s48, s48, s45          ; z part
    s_lshl_b32 s49, s44, 9           ; kv counters of this head
    s_lshl_b32 s52, s3, 11
    s_add_u32 s52, s52, %d           ; own exchange slot
    s_lshl_b32 s53, s3, 7
    s_lshl_b32 s43, s36, 6
    s_add_u32 s53, s53, s43
    s_add_u32 s53, s53, %d           ; z exchange
    s_mov_b32 s50, %d
    s_waitcnt lgkmcnt(0)
    s_lshl_b32 s64, s28, 7
    s_lshl_b32 s65, s3, 5
    s_add_u32 s64, s64, s65          ; R0 = i3*128 + 32w
    s_lshl_b32 s42, s64, 11
    s_lshl_b32 s65, s29, 7
    s_add_u32 s42, s42, s65          ; soffset rb0
    s_add_u32 s43, s42, 0x8000       ; soffset rb1
    s_lshl_b32 s66, s44, 1
    s_add_u32 s66, s66, s36
    s_lshl_b32 s66, s66, 4
    s_add_u32 s66, s66, s32
    s_lshl_b32 s66, s66, 10          ; partial slot [head][eb=wr][i]
    """ % (f32(2.0 ** -60 / 1.4426950408889634), EPS6, f32(2.0 ** 60), M.NML, M.CL, FL, FL, KX, M.ZX, M.F_SC + 12 - (M.F_KX - FL)))
    assert M.CL % 128 == 0 and KX % 8192 == 0 and M.ZX % 512 == 0 and FL % 16 == 0
    a.srd(12, 4, 2048 * 2048)
    a.srd(16, 6, 1024 * 6144)
    a.srd(20, 8, 1024 * 2048)
    a.srd(24, 72, M.ZB, M.KV_OFF)
    a.srd(84, 72, MB, M.KVP_OFF)
    if dg.on: a("v_writelane_b32 v166, s96, 0")
    def rdA(gr, ks, b, rb):
        base = gr * G
        w = 1 if base >= 65536 else 0
        return "ds_read_b128 %s, v%d offset:%d" % (q4(b + 4 * rb), 4 + 2 * w + ks, base - w * 65536 + rb * 2048)
    def rdB(gr, ks, nb, slot):
        base = gr * G
        assert base >= 65536
        w = 1 if base >= 98304 else 0
        return ["ds_read_b64_tr_b16 %s, v%d offset:%d" % (pr(OPB + 4 * slot + 2 * h), 8 + 2 * w + nb, base - 65536 - w * 32768 + ks * 4096 + h * 512) for h in range(2)]
    S = LgkmStream(a)
    GR = [(1, 0), (1, 1), (2, 0), (2, 1)]
    NU = 32
    def abuf(u): return OPA + 16 * (u & 1)
    def bread(x):
        u = x // 4; kind, nb = GR[x % 4]
        return rdB(AL[("QKV"[kind], u // 2)][0], u % 2, nb, x % 6)
    for w in range(4 if cfg.get("nev", 0) else 0):
        lab = a.label("EV")
        a("s_cmp_lg_u32 s3, %d" % w)
        a("s_cbranch_scc1 %s" % lab)
        for k_ in range(cfg.get("nev", 0)): a("; @@VISIT:e:%d@@" % (k_ * 4 + w))
        a("%s:" % lab)
    a("; @@PRI:e:2@@")
    if cfg.get("diag2") == 5: dc.t(0)
    a("s_barrier")
    if cfg.get("diag2") == 1: dc.t(0)
    S.emit(rdA(AL[("X", 0)][0], 0, abuf(0), 0))
    for r in bread(0): S.emit(r)
    for rb in range(1, 4): S.emit(rdA(AL[("X", 0)][0], 0, abuf(0), rb))
    for x_ in range(1, 4):
        for r in bread(x_): S.emit(r)
    nb_iss = 4
    x = 0
    BP = cfg.get("bp", 2)
    CSR = OPB + 4 * ((4 * NU) % 6)
    assert (4 * NU) % 6 <= 4
    EA = OPA
    tail_ds = []
    for rb in range(4):
        tail_ds.append("ds_read_b128 %s, v164 offset:%d" % (q4(TB + 8 * rb), rb * 64))
        if rb == 0:
            for kind in (1, 2):
                for nb in range(2):
                    tail_ds.append("ds_read2_b32 %s, v%d offset0:%d offset1:%d" % (pr(CSR + 4 * (kind - 1) + 2 * nb), (165, 2)[nb], kind * 64, kind * 64))
        tail_ds.append("ds_read_b128 %s, v164 offset:%d" % (q4(TB + 8 * rb + 4), 1024 + rb * 64))
    ONES = EA + 8
    tail_v = """
    v_lshlrev_b32 v18, 4, v0
    v_add_u32 v12, s52, v18
    v_xor_b32 v13, 4096, v12
    v_and_b32 v14, 0x30, v0
    v_add_u32 v14, s53, v14
    v_xor_b32 v15, 64, v14
    v_lshlrev_b32 v19, 2, v0
    v_add_u32 v16, s53, v19
    v_xor_b32 v17, 256, v16
    v_xor_b32 v18, 8, v3
    v_writelane_b32 v18, s50, 1
    v_mov_b32 v20, 0x3f803f80
    v_mov_b32 v21, 0x3f803f80
    v_mov_b32 v22, 0x3f803f80
    v_mov_b32 v23, 0x3f803f80
    v_mov_b32 v24, 1
    v_and_b32 v4, 15, v0
    v_bfe_u32 v5, v0, 4, 1
    v_lshlrev_b32 v5, 5, v5
    v_lshrrev_b32 v6, 5, v0
    v_lshl_add_u32 v5, v6, 4, v5
    v_lshl_add_u32 v7, v4, 11, v5
    v_lshlrev_b32 v6, 4, v0
    """.strip().split("\n")
    for u in range(NU):
        g, ks = u // 2, u % 2
        rq = []
        opened = (ks == 0)
        aq = False
        k = 0
        if u == NU - 2: S.emit("ds_read_b32 v%d, v1 offset:%d" % (TB, M.F_SC - FL))
        for gi, (kind, nb) in enumerate(GR):
            for rb in range(4):
                if not opened and k == BP:
                    assert not rq
                    S.drain()
                    if g < 15 and cfg.get("diag2") in (1, 5): dc.t(g + 1)
                    if g in (0, 7): dg.t(1 + g // 7)
                    a("s_barrier")
                    opened = True
                    if u == NU - 1 and not cfg.get("p1only"):
                        lab = a.label("SCK")
                        a("v_cmp_gt_u32 vcc, 1, v%d" % TB)
                        a("s_and_b32 vcc_lo, vcc_lo, 3")
                        a("s_cbranch_scc0 %s" % lab)
                        a("v_and_b32 v%d, 1, v0" % (TB + 1))
                        a("v_lshlrev_b32 v%d, 2, v%d" % (TB + 1, TB + 1))
                        a("v_add_u32 v%d, %d, v%d" % (TB + 1, M.F_SC, TB + 1))
                        flag_wait(a, TB, TB + 1, 1)
                        a("%s:" % lab)
                        rq = list(tail_ds)
                if opened and u + 1 < NU:
                    def pull():
                        nonlocal nb_iss
                        while nb_iss < 4 * (u + 2) and nb_iss - 6 < x:
                            rq.extend(bread(nb_iss)); nb_iss += 1
                    if not aq:
                        A_ = [rdA(AL[("X", (u + 1) // 2)][0], (u + 1) % 2, abuf(u + 1), r_) for r_ in range(4)]
                        rq.append(A_[0]); pull(); rq[3:3] = A_[1:]
                        aq = True
                    pull()
                S.emit(mfma16(acc(kind, nb, rb), abuf(u) + 4 * rb, OPB + 4 * (x % 6), u == 0))
                k += 1
                if rq: S.emit(rq.pop(0))
                if u == NU - 1:
                    for _ in range(1 if rq else 2):
                        if tail_v: a(tail_v.pop(0))
            x += 1
        for r in rq: S.emit(r)
    for x_ in tail_v: a(x_)
    a("; @@PRI:l:1:DENS@@")
    dg.t(3, S)
    if cfg.get("p1only"):
        a('s_cmp_lg_u32 s3, 0')
        a('s_cbranch_scc1 F_end')
        dg.out(0)
        dc.out(3)
        a("s_endpgm")
    d4 = dc if cfg.get("diag2") == 4 else Diag(a, 0, 0)
    d4.t(0, S)
    T = 28
    def PK(db, u): return KAC + 16 * db + 4 * u
    def VP(eb, u): return VAC + 16 * eb + 4 * u
    fr = [OPB + 4 * s_ for s_ in range(6) if not (CSR <= OPB + 4 * s_ < CSR + 8)]
    def KVD(eb, db): return fr[eb * 2 + db]
    def ZD(db): return TB + 4 * db
    def kvm(u): return [mfma16(KVD(1, db), PK(db, u), VP(1, u), u == 0) for db in range(2)] + [mfma16(ZD(db), PK(db, u), ONES, u == 0) for db in range(2)] + [mfma16(KVD(0, db), PK(db, u), VP(0, u), u == 0) for db in range(2)]
    for rb in range(4):
        b = TB + 8 * rb
        for kind in (1, 2):
            for nb in range(2):
                d = acc(kind, nb, rb)
                for h in (0, 2):
                    S.emit("v_pk_fma_f32 %s, %s, %s, %s" % (pr(d + h), pr(b + h), pr(CSR + 4 * (kind - 1) + 2 * nb), pr(d + h)))
        for kind in (1, 2):
            for nb in range(2):
                d = acc(kind, nb, rb)
                for h in (0, 2):
                    S.emit("v_pk_mul_f32 %s, %s, %s" % (pr(d + h), pr(d + h), pr(b + 4 + h)))
        ph = phi([acc(1, nb, rb) + h for nb in range(2) for h in (0, 2)], T + 8 * (rb & 1))
        mq = (kvm(0)[:3] if rb == 2 else kvm(0)[3:] if rb == 3 else []) if cfg.get("kvi", 1) else []
        for i_, x_ in enumerate(ph[:8]):
            if mq and i_ % 2 == 0: a(mq.pop(0))
            a(x_)
        for nb in range(2):
            for x_ in pack_list(VAC + 16 * nb + 2 * rb, acc(2, nb, rb), 4): a(x_)
        for x_ in ph[8:]: a(x_)
        for nb in range(2):
            for x_ in pack_list(KAC + 16 * nb + 2 * rb, acc(1, nb, rb), 4): a(x_)
        d4.t(1 + rb, S)
    if not cfg.get("kvi", 1):
        for x_ in kvm(0): a(x_)
    for x_ in kvm(1): a(x_)
    XRL = [140, 144, 156, 160]
    def xload():
        for g_ in range(4):
            a("buffer_load_dwordx4 %s, v7, s[12:15], s%d offen offset:%d" % (q4(XRL[g_]), 42 + g_ // 2, (g_ % 2) * 64))
    XE = cfg.get("xe", 1)
    if XE == 1: xload()
    d4.t(5)
    for db in range(2): a("ds_write_b128 v12, %s offset:%d" % (q4(KVD(1, db)), db * 1024))
    d4.t(6)
    a("s_mov_b32 exec_lo, 0x10001")
    a("s_mov_b32 exec_hi, 0x10001")
    a("ds_write_b128 v14, %s" % q4(ZD(0)))
    a("ds_write_b128 v15, %s" % q4(ZD(1)))
    a("s_mov_b64 exec, 1")
    a("ds_write_b32 v3, v24 offset:%d" % (M.F_KX - FL))
    a("s_mov_b64 exec, -1")
    d4.t(7)
    RX = 28
    a("F_xw:")
    spin_guard(a)
    a("ds_read_b32 v25, v18 offset:%d" % (M.F_KX - FL))
    a("ds_read_b128 %s, v13 offset:1024" % q4(RX))
    a("ds_read_b128 %s, v13" % q4(RX + 4))
    a("ds_read_b32 v26, v16")
    a("ds_read_b32 v27, v17")
    a("s_waitcnt lgkmcnt(4)")
    a("v_cmp_eq_u32 vcc, 0, v25")
    a("s_cbranch_vccz F_xx")
    a("s_waitcnt lgkmcnt(0)")
    a("s_branch F_xw")
    a("F_xx:")
    d4.t(8)
    GA = cfg.get("ga", 0)
    NAT = 2 if GA else 9
    for db in range(2):
        a("s_waitcnt lgkmcnt(%d)" % (3 - db))
        for r in range(4):
            d = KVD(0, db) + r
            a("v_add_f32 v%d, v%d, v%d" % (d, d, RX + 4 * db + r))
        if GA:
            for x_ in pack_list(36 + 2 * db, KVD(0, db), 4): a(x_)
        else:
            for r in range(4):
                a("buffer_atomic_add_f32 v%d, v19, s[24:27], s%d offen offset:%d" % (KVD(0, db) + r, 46 + db, r * 256))
    if GA: a("buffer_store_dwordx4 v[36:39], v6, s[84:87], s66 offen sc0 sc1")
    a("s_waitcnt lgkmcnt(0)")
    a("v_add_f32 v26, v26, v27")
    a("s_mov_b64 exec, 0xffff")
    a("buffer_atomic_add_f32 v26, v19, s[24:27], s48 offen")
    a("s_mov_b64 exec, 1")
    a("ds_add_u32 v3, v24 offset:%d" % (M.F_KX - FL))
    a("s_mov_b64 exec, -1")
    dg.t(4)
    d4.t(9)
    if XE != 1: xload()
    a("s_setprio %d" % cfg.get("cprio2", 2))
    AC3 = 100
    a("""
    v_mov_b32 v2, v7                 ; epilogue voffset
    s_lshl_b32 s47, s3, 7
    s_add_u32 s47, s47, NM3A
    v_lshlrev_b32 v5, 2, v4
    v_add_u32 v5, s47, v5
    ds_read2_b32 v[76:77], v5 offset0:0 offset1:128
    ds_read2_b32 v[78:79], v5 offset0:16 offset1:144
    v_lshrrev_b32 v4, 3, v0          ; r
    v_and_b32 v5, 7, v0              ; c
    v_lshrrev_b32 v6, 1, v4          ; r>>1
    v_lshlrev_b32 v7, 1, v6
    v_xor_b32 v7, v5, v7
    v_lshlrev_b32 v7, 4, v7
    v_lshl_add_u32 v40, v4, 11, v7   ; wo voffset
    v_and_b32 v6, 1, v6
    v_lshlrev_b32 v6, 1, v6
    v_xor_b32 v41, v5, v6
    v_xor_b32 v42, 4, v41
    v_lshlrev_b32 v41, 4, v41
    v_lshlrev_b32 v42, 4, v42
    v_mul_u32_u24 v7, 6144, v4
    v_add_u32 v41, v41, v7           ; W voffset even
    v_add_u32 v42, v42, v7
    v_add_u32 v42, 49152, v42        ; odd
    s_mul_i32 s56, s3, %d
    s_lshl_b32 s47, s10, 7
    s_add_u32 s56, s56, s47          ; Wq base
    s_lshl_b32 s57, s29, 7
    s_lshl_b32 s47, s3, 15
    s_add_u32 s57, s57, s47          ; wo base
    s_and_b32 s81, s28, 3
    s_mul_i32 s81, s81, ROTA         ; rotation (tiles)
    s_lshr_b32 s47, s28, 2
    s_mul_i32 s47, s47, %d
    s_add_u32 s81, s81, s47
    s_lshl_b32 s78, s3, 11
    s_lshl_b32 s44, s10, 1
    s_add_u32 s44, s44, s37          ; q head
    s_mul_i32 s45, s44, 4224
    s_mov_b32 s52, s45
    s_add_u32 s53, s45, 4096
    s_lshl_b32 s51, s44, 2
    s_and_b32 s47, s32, 3
    s_add_u32 s51, s51, s47
    s_lshl_b32 s51, s51, 7
    v_xor_b32 v18, 8, v3
    v_mov_b32 v25, 0
    """.replace("NM3A", str(M.NM3)).replace("ROTA", str(cfg.get("rot", 0))) % (16 * 6144, cfg.get("rotb", 0)))
    s_addr(a, 54, 51, M.KV_OFF + M.R_KV)
    s_addr(a, 82, 49, M.KV_OFF + M.R_KV)
    def cpwait(c):
        if c <= 0: return
        lab = a.label("CW")
        a("v_cmp_gt_u32 vcc, %d, v25" % c)
        a("s_cbranch_vccz %s" % lab)
        flag_wait(a, 25, 1, c, sleep=cfg.get("cs", 2), off=M.F_CP - FL)
        a("%s:" % lab)
    nv = 0
    wq = [x_ for x_ in P["acts"] if x_[1] == "wq"]
    wo = sorted([x_ for x_ in P["acts"] if x_[1] == "wo"])
    for (c, _, n, gr) in wq:
        g = QO[n]
        cpwait(c)
        a("s_bfe_u32 s47, s%d, 0x%x" % (94 + g // 8, (4 << 16) | (4 * (g % 8))))
        a("s_add_u32 s47, s89, s47")
        a("s_and_b32 s47, s47, 15")
        a("s_mul_i32 s47, s47, %d" % (64 * 6144))
        a("s_add_u32 m0, s78, %d" % (gr * G))
        a("s_add_u32 s47, s47, s56")
        a("buffer_load_dwordx4 v41, s[16:19], s47 offen lds")
        a("s_add_u32 m0, m0, 1024")
        a("s_nop 0")
        a("buffer_load_dwordx4 v42, s[16:19], s47 offen lds")
        nv += 2
    nq_ = nv
    if cfg.get("tw", 0) == 0:
        a("""
        v_lshrrev_b32 v26, 3, v0
        v_and_b32 v27, 7, v0
        v_lshlrev_b32 v27, 7, v27
        v_lshl_add_u32 v26, v26, 11, v27
        s_lshl_b32 s47, s31, 2
        s_add_u32 s47, s47, s3
        s_lshl_b32 s47, s47, 14
        s_lshr_b32 s50, s30, 2
        s_lshl_b32 s50, s50, 10
        s_add_u32 s47, s47, s50
        buffer_load_dword v27, v26, s[20:23], s47 offen
        """)
        nv += 1
    def residual(vw):
        a("s_setprio %d" % cfg.get("cprio3", 2))
        a("s_waitcnt lgkmcnt(0)")
        for rb in range(2):
            a("v_mul_f32 v%d, v%d, v%d" % (76 + 2 * rb, 76 + 2 * rb, 77 + 2 * rb))
            a("v_add_f32 v%d, 1.0, v%d" % (77 + 2 * rb, 77 + 2 * rb))
        a("s_waitcnt vmcnt(%d)" % vw)
        for g in range(4):
            rb = g // 2
            b = AC3 + 8 * g
            for i in range(4):
                a("v_lshlrev_b32 v%d, 16, v%d" % (b + 2 * i, XRL[g] + i))
                a("v_and_b32 v%d, 0xffff0000, v%d" % (b + 2 * i + 1, XRL[g] + i))
            for i in range(8):
                a("v_fma_f32 v%d, v%d, v%d, v%d" % (b + i, b + i, 77 + 2 * rb, 76 + 2 * rb))
        for g in range(4):
            for r in range(4):
                a("v_permlane16_swap_b32 v%d, v%d" % (AC3 + 8 * g + r, AC3 + 8 * g + 4 + r))
        a("s_setprio %d" % cfg.get("cprio2", 2))
        dg.t(6)
    if XE == 1: residual(nv + NAT)
    a("s_waitcnt vmcnt(%d)" % (nv + (0 if XE == 1 else 4)))
    s_signal(a, 82, 49)
    fset(3, 26, 3, off=M.F_KX - FL)
    dg.t(5)
    if wq:
        a("s_waitcnt vmcnt(%d)" % (nv - nq_))
        fset(3, 26, 1, off=M.F_LP - FL)
    if XE == 0: residual(nv)
    WD = cfg.get("wd", 3); W0 = 0
    def wotile(k_):
        c, _, m, gr = wo[k_]
        cpwait(c)
        if k_ >= WD: a("s_waitcnt vmcnt(%d)" % (4 * (WD - 1)))
        if cfg.get("wgl", 0):
            lab = a.label("WG")
            a("ds_read_b32 v26, v27 offset:%d" % (M.F_KV - FL))
            a("s_waitcnt lgkmcnt(0)")
            a("v_cmp_eq_u32 vcc, 1, v26")
            a("s_cbranch_vccz %s" % lab)
            flag_wait(a, 26, 27, 2, sleep=1, off=M.F_KV - FL)
            a("%s:" % lab)
        if cfg.get("wlt", 0) and k_ >= W0:
            lab = a.label("WL")
            a("ds_read_b32 v26, v1 offset:%d" % (M.F_KV - FL))
            a("s_waitcnt lgkmcnt(0)")
            a("v_cmp_le_u32 vcc, 2, v26")
            a("s_cbranch_vccz %s" % lab)
            flag_wait(a, 26, 1, cfg["wlt"], sleep=1, off=M.F_OA - FL)
            a("%s:" % lab)
        a("s_add_u32 s47, s81, %d" % m)
        a("s_and_b32 s47, s47, 15")
        a("s_lshl_b32 s47, s47, 17")
        a("s_add_u32 m0, s79, %d" % (gr * G))
        a("s_add_u32 s47, s47, s57")
        for i in range(4):
            if i:
                a("s_add_u32 m0, m0, 1024")
                a("s_add_u32 s47, s47, 16384")
            a("buffer_load_dwordx4 v40, s[20:23], s47 offen lds")
    a("""
    s_lshl_b32 s57, s29, 7
    s_and_b32 s47, s3, 1
    s_lshl_b32 s79, s47, 12
    s_lshl_b32 s47, s47, 16
    s_add_u32 s57, s57, s47          ; rows 32*(w&1)
    """)
    a("s_cmp_ge_u32 s3, 2")
    a("s_cbranch_scc1 F_wo")
    flag_wait(a, 26, 18, 2, off=M.F_KX - FL)
    if GA:
        E = 28; GAC = 44; ZR = 60
        ring = [68 + 4 * k for k in range(8)] + [132 + 4 * k for k in range(8)]
        NR = len(ring)
        a("""
        v_lshlrev_b32 v9, 4, v0
        v_and_b32 v8, 0x30, v0           ; z voffset q*16
        v_lshrrev_b32 v4, 2, v8          ; 4q
        v_and_b32 v5, 15, v0
        v_sub_u32 v4, v5, v4             ; t = m - 4q
        v_and_b32 v5, 1, v4
        v_lshlrev_b32 v5, 4, v5
        v_mov_b32 v6, 0x3f80
        v_lshlrev_b32 v5, v5, v6
        v_lshrrev_b32 v4, 1, v4
        v_mov_b32 v28, 0
        v_mov_b32 v29, 0
        v_mov_b32 v32, 0
        v_mov_b32 v33, 0
        v_cmp_eq_u32 vcc, 0, v4
        v_cndmask_b32 v30, v28, v5, vcc
        v_cmp_eq_u32 vcc, 1, v4
        v_cndmask_b32 v31, v28, v5, vcc
        s_lshl_b32 s50, s44, 15
        """)
        s_poll(a, 54, 32, 58, sleep=cfg.get("ks", 1))
        dg.t(7)
        KSC = [" sc0 sc1", " sc1"][cfg.get("ksc", 1)]
        def gl(n):
            if n % 4 == 0 and n: a("s_add_u32 s50, s50, 4096")
            a("buffer_load_dwordx4 %s, v9, s[84:87], s50 offen offset:%d%s" % (q4(ring[n % NR]), (n % 4) * 1024, KSC))
        a("s_mov_b64 exec, 1")
        a("ds_write_b32 v3, v24 offset:%d" % (M.F_KV - FL))
        a("s_mov_b64 exec, -1")
        for db in range(2):
            a("buffer_load_dwordx4 %s, v8, s[24:27], s53 offen offset:%d%s" % (q4(ZR + 4 * db), db * 64, KSC))
        for n in range(NR): gl(n)
        for n in range(32):
            eb = n // 16
            a("s_waitcnt vmcnt(%d)" % (min(32, n + NR) - n - 1))
            for db in range(2):
                a(mfma16(GAC + 8 * eb + 4 * db, E + (2 if db == eb else 0), ring[n % NR], n % 16 == 0))
            if n + NR < 32: gl(n + NR)
            if n == 0:
                for x_ in pack_list(ZR, ZR, 8): a(x_)
                a("ds_write_b128 v13, %s" % q4(ZR))
            if n == 18:
                for x_ in pack_list(GAC, GAC, 8): a(x_)
                a("ds_write_b128 v12, %s" % q4(GAC))
        for x_ in pack_list(GAC + 8, GAC + 8, 8): a(x_)
        a("ds_write_b128 v12, %s offset:1024" % q4(GAC + 8))
    else:
        a("v_lshlrev_b32 v9, 4, v0")
        a("s_lshl_b32 s50, s3, 7")
        a("s_add_u32 s50, s50, %d" % M.ZX)
        a("s_add_u32 m0, s78, %d" % KX)
        s_poll(a, 54, 32, 58, sleep=cfg.get("ks", 1))
        dg.t(7)
        KSC = [" sc0 sc1", " sc1"][cfg.get("ksc", 1)]
        for t_ in range(4):
            if t_ == 2: a("s_add_u32 m0, m0, 2048")
            a("buffer_load_dwordx4 v9, s[24:27], s52 offen offset:%d%s lds" % (t_ * 1024, KSC))
        a("s_mov_b32 m0, s50")
        a("s_mov_b32 exec_hi, 0")
        a("buffer_load_dword v19, s[24:27], s53 offen%s lds" % KSC)
        a("s_mov_b64 exec, 1")
        if cfg.get("kdf", 0):
            a("s_lshl_b32 s50, s3, 2")
            a("s_add_u32 m0, s50, %d" % M.F_KV)
            a("s_add_u32 s51, s51, %d" % M.R_KV)
            a("buffer_load_dword v19, s[24:27], s51 offen sc1 lds")
        else:
            a("ds_write_b32 v3, v24 offset:%d" % (M.F_KV - FL))
        a("s_waitcnt vmcnt(0)")
    a("s_mov_b64 exec, 1")
    if not cfg.get("kdf", 0): a("ds_add_u32 v3, v24 offset:%d" % (M.F_KV - FL))
    a("s_mov_b64 exec, -1")
    dg.t(8)
    a("s_branch F_wj")
    a("F_wo:")
    if cfg.get("wgl", 0):
        a("s_waitcnt vmcnt(0)")
        a("v_and_b32 v27, 0xfffffff7, v1")
    if cfg.get("wg0"): flag_wait(a, 26, 1, cfg["wg0"], sleep=2, off=M.F_MW - FL)
    for k_ in range(W0, 16):
        if k_ == cfg.get("wgm", 99): flag_wait(a, 26, 1, 1, sleep=1, off=M.F_MF1 - FL)
        wotile(k_)
    dg.t(7)
    a("s_waitcnt vmcnt(0)")
    a("s_mov_b64 exec, 1")
    a("ds_write_b32 v3, v24 offset:%d" % (M.F_WO - FL))
    a("s_mov_b64 exec, -1")
    dg.t(8)
    a("F_wj:")
    if XE == 2: residual(0)
    a("v_mov_b32 v5, %d" % (M.F_SC + 8))
    flag_wait(a, 6, 5, 1, sleep=1)
    a("""
    v_and_b32 v5, 7, v0
    v_lshlrev_b32 v5, 2, v5
    v_add_u32 v5, %d, v5
    ds_read_b32 v5, v5
    s_lshr_b32 s47, s64, 5
    s_sub_u32 s47, 63, s47
    s_mov_b64 s[60:61], 0
    s_waitcnt lgkmcnt(0)
    v_bfe_u32 v5, v5, 5, 6
    v_cmp_eq_u32 vcc, s47, v5
    s_cbranch_vccz F_ns
    """ % M.SELL)
    a("v_mov_b32 v5, %d" % M.SELL)
    a("ds_read_b128 v[44:47], v5")
    a("ds_read_b128 v[48:51], v5 offset:16")
    a("v_and_b32 v6, 15, v0")
    a("v_add_u32 v6, s64, v6")
    a("v_sub_u32 v6, 2047, v6")
    a("v_subrev_u32 v7, 16, v6")
    a("v_mov_b32 v164, 0")
    a("v_mov_b32 v165, 0")
    a("s_waitcnt lgkmcnt(0)")
    for t in range(8):
        a("v_and_b32 v5, 0x7ff, v%d" % (44 + t))
        a("v_or_b32 v%d, 0x%x, v%d" % (44 + t, (t << 11) | 0x4000, 44 + t))
        a("v_cmp_eq_u32 vcc, v5, v6")
        a("v_cmp_eq_u32 s[62:63], v5, v7")
        a("v_cndmask_b32 v164, v164, v%d, vcc" % (44 + t))
        a("v_cndmask_b32 v165, v165, v%d, s[62:63]" % (44 + t))
    a("s_mov_b64 s[60:61], 1")
    a("F_ns:")
    dg.t(9)
    a("; @@PRI:l:4:DENS@@")
    a("""
    s_lshl_b32 s51, s28, 2
    s_add_u32 s51, s51, s3
    s_lshl_b32 s51, s51, 2
    s_and_b32 s47, s29, 3
    s_add_u32 s51, s51, s47
    s_lshl_b32 s51, s51, 7
    """)
    s_addr(a, 54, 51, M.KV_OFF + M.R_O)
    a("""
    v_lshlrev_b32 v98, 4, v0         ; lane*16
    v_lshrrev_b32 v16, 4, v0         ; q
    v_bfe_u32 v17, v0, 2, 2
    v_lshl_add_u32 v17, v16, 2, v17  ; row = 4q + r
    v_bfe_u32 v16, v17, 1, 2         ; f(row)
    v_lshlrev_b32 v16, 5, v16
    v_lshl_add_u32 v16, v17, 7, v16
    v_and_b32 v17, 3, v0
    v_lshl_add_u32 v4, v17, 3, v16
    v_xor_b32 v5, 32, v4
    v_xor_b32 v6, 64, v4
    v_xor_b32 v7, 96, v4
    s_lshl_b32 s79, s28, 18
    s_lshl_b32 s80, s3, 16
    s_add_u32 s79, s79, s80
    s_lshl_b32 s81, s81, 11          ; rotation in bytes
    v_mov_b32 v99, 1
    """)
    W3 = (0, 57344, 114688)
    for w in range(1, 3):
        for nb in range(4):
            a("v_add_u32 v%d, %d, v%d" % (4 + 4 * w + nb, W3[w], 4 + nb))
    a.srd(16, 72, 4 * MB, M.O_OFF)
    a.srd(12, 68, 2048 * 2048)
    OB3 = 16
    DP = cfg.get("dp", 6)
    obufs = [48 + 8 * k for k in range(6)] + [132 + 8 * k for k in range(4)]
    NOB = DP + 1
    assert NOB <= len(obufs)
    def b3reads(st):
        base = P["wo"][st // 2] * G
        w = max(k for k in range(3) if W3[k] <= base)
        return ["ds_read_b64_tr_b16 %s, v%d offset:%d" % (pr(OB3 + 16 * (st & 1) + 4 * nb + 2 * h), 4 + 4 * w + nb, base - W3[w] + (st & 1) * 4096 + h * 2048) for nb in range(4) for h in range(2)]
    OSC = ["", " sc1", " sc0 sc1"][cfg.get("osc", 1)]
    def oload(st):
        b = obufs[st % NOB]
        out = []
        if st % 2 == 0:
            out += ["s_add_u32 s80, s81, %d" % (st * 1024), "s_and_b32 s80, s80, 0x7fff", "s_add_u32 s80, s80, s79", "s_add_u32 s82, s80, 0x8000"]
        out += ["buffer_load_dwordx4 %s, v98, s[16:19], s80 offen offset:%d%s" % (q4(b), (st % 2) * 1024, OSC),
                "buffer_load_dwordx4 %s, v98, s[16:19], s82 offen offset:%d%s" % (q4(b + 4), (st % 2) * 1024, OSC)]
        return out
    a("s_setprio %d" % cfg.get("cprio4", 2))
    dg.t(10)
    s_poll(a, 54, cfg.get("otgt", 16), 47, sleep=cfg.get("os", 0))
    dg.t(11)
    for st in range(DP):
        for x_ in oload(st): a(x_)
    a("v_or_b32 v17, 8, v1")
    flag_wait(a, 16, 17, 1, off=M.F_WO - FL)
    S = LgkmStream(a)
    for r in b3reads(0): S.emit(r)
    def acc3(rb, nb): return AC3 + (rb * 4 + nb) * 4
    for st in range(32):
        rq = b3reads(st + 1) if st + 1 < 32 else []
        lq = oload(st + DP) if st + DP < 32 else []
        outst = min(32, st + DP) - st - 1
        a("s_waitcnt vmcnt(%d)" % (2 * outst))
        if st == 0: dg.t(12, S)
        k = 0
        for nb in range(4):
            for rb in range(2):
                S.emit(mfma16(acc3(rb, nb), OB3 + 16 * (st & 1) + 4 * nb, obufs[st % NOB] + 4 * rb, False))
                k += 1
                if rq: S.emit(rq.pop(0))
                if k in (2, 5) and lq:
                    while lq:
                        x_ = lq.pop(0); a(x_)
                        if x_.startswith("buffer"): break
        assert not rq and not lq
        if cfg.get("diag2") == 3 and st % 2 == 1: dc.t(st // 2, S)
    dg.t(14, S)
    for g in range(4):
        for r in range(4):
            a("v_permlane16_swap_b32 v%d, v%d" % (AC3 + 8 * g + r, AC3 + 8 * g + 4 + r))
    TY = 16
    a("""
    s_cmp_eq_u64 s[60:61], 0
    s_cbranch_scc1 F_fin
    s_mov_b32 s48, 0x%x
    v_and_b32 v7, 0x3f, v2
    v_lshlrev_b32 v7, 1, v7
    v_add_u32 v7, %d, v7
    v_mov_b32 v6, %d
    """ % (LOG2E ^ 0x80000000, M.YL, M.F_Y))
    flag_wait(a, 5, 6, 1)
    for rb in range(2):
        kreg = 164 + rb
        lab = a.label("F_rb")
        a("v_bfe_u32 v4, v%d, 11, 3" % kreg)
        a("v_lshl_add_u32 v4, v4, 8, v7")
        a("v_cmp_ne_u32 vcc, 0, v%d" % kreg)
        a("s_and_saveexec_b64 s[50:51], vcc")
        a("s_cbranch_execz %s" % lab)
        for m in range(2):
            for hh in range(2):
                a("ds_read_b128 %s, v4 offset:%d" % (q4(TY + 8 * m + 4 * hh), m * 128 + hh * 16))
        a("v_and_b32 v5, 0xffff0000, v%d" % kreg)
        a("v_ashrrev_i32 v6, 31, v5")
        a("v_not_b32 v6, v6")
        a("v_or_b32 v6, 0x80000000, v6")
        a("v_xor_b32 v5, v5, v6")
        a("v_and_b32 v5, 0xffff0000, v5")
        a("v_mul_f32 v5, s48, v5")
        a("v_exp_f32 v5, v5")
        a("v_add_f32 v5, 1.0, v5")
        a("v_rcp_f32 v5, v5")
        a("v_cvt_pk_bf16_f32 v5, v5, v5")
        a("v_lshlrev_b32 v5, 16, v5")
        a("s_waitcnt lgkmcnt(0)")
        for i in range(16):
            a("v_fmac_f32 v%d, v%d, v5" % (AC3 + 16 * rb + i, TY + i))
        a("%s:" % lab)
        a("s_mov_b64 exec, s[50:51]")
    a("F_fin:")
    for g in range(4):
        rb, m = g // 2, g % 2
        for x_ in pack_list(48 + 4 * g, AC3 + 8 * g, 8): a(x_)
        a("buffer_store_dwordx4 %s, v2, s[12:15], s%d offen offset:%d sc1" % (q4(48 + 4 * g), 42 + rb, m * 64))
    dg.t(15)
    if dg.on:
        if not dc.on:
            a('s_cmp_lg_u32 s3, 2')
            a('s_cbranch_scc1 F_dz')
            dg.out(3)
            a("F_dz:")
        a('s_cmp_lg_u32 s3, 0')
        a('s_cbranch_scc1 F_end')
        dg.out(0)
        if cfg.get("diag2") != 2: dc.out(3)
    a("s_endpgm")
```

```python
import hazard

class LgkmStream:
    def __init__(self, a):
        self.a = a
        self.pend = []

    def emit(self, text):
        ins = hazard.Ins(text)
        if ins.kind in ("mfma", "valu", "vmem", "ds"):
            use = ins.r | ins.w
            last = -1
            for i, w in enumerate(self.pend):
                if w & use: last = i
            if last >= 0:
                n = len(self.pend) - 1 - last
                n = min(n, 15)
                self.a("s_waitcnt lgkmcnt(%d)" % n)
                self.pend = self.pend[len(self.pend) - n:] if n else []
        self.a(text)
        if ins.kind == "ds":
            self.pend.append(set(ins.w))

    def require(self, regs):
        last = -1
        for i, w in enumerate(self.pend):
            if w & regs: last = i
        if last >= 0:
            n = min(len(self.pend) - 1 - last, 15)
            self.a("s_waitcnt lgkmcnt(%d)" % n)
            self.pend = self.pend[len(self.pend) - n:] if n else []

    def drain(self):
        if self.pend:
            self.a("s_waitcnt lgkmcnt(0)")
            self.pend = []
```

```python
from common import *
import alloc4

O_OFF = 4 * MB
KV_OFF = 8 * MB
KV_BYTES = 32 * 4224
Y_REL = KV_BYTES
C_Y = KV_BYTES + 32768
C_PRE = C_Y
R_KV = 256 * 720
R_O = R_KV + 16384
R_Y = R_O + 32768
ZPER = 1152
ZB = 256 * ZPER
KEY_OFF = 8 * MB + 320 * 1024
ST_REL = 8192
CX_REL = 32768
PRE_OFF = 9 * MB
PRE_BYTES = 4 * 2 * 8 * 3584 * 4
CS_OFF = 8 * MB + 384 * 1024
KVP_OFF = 10 * MB
GO = 1000
SCR = 19 * G
NML, RSL, RLL, NM3, RS3 = SCR, SCR + 512, SCR + 1024, SCR + 1536, SCR + 2048
CL = SCR + 2560
SELL = SCR + 3328
FLG = SCR + 3392
F_CP, F_LP, F_KX, F_SC, F_MF1, F_MF2, F_Y, F_LQ, F_KV, F_OA, F_WO, F_MW = [FLG + 16 * k for k in range(12)]
ZX = SCR + 3584
YL = SCR + 4096
WRL = SCR + 6144


def gen(a, cfg):
    name = NAME + "_kernel"
    DR = [int(ch) for ch in "%016d" % cfg.get("dr", 122111111100000)]
    P = alloc4.allocate(DR, cfg.get("R", 4), nxe=cfg.get("nxe", 4), MSC=cfg.get("msc", 6), NQ0=cfg.get("nq0", 99), SS=cfg.get("ss", 2), SF=cfg.get("ss", 2) + 1, verbose=cfg.get("v", 0))
    AL = P["res"]; QO = P["qorder"]; NST = len(QO)
    LAT = True
    KT, CST = latin_tables(cfg.get("kd0", 1), cfg.get("dl", 1), cfg.get("lor", 0))
    if cfg.get("v"): print(KT)
    MS = (P["ms"][0] * G, P["ms"][1] * G)
    KX = P["kx"] * G
    NT = " nt" if cfg.get("nt", 1) else ""
    a.launch(name, 256, 768, 163840)
    a.begin_kernel(name)
    a.safe = "F_end" if cfg.get("safe") else None
    dg = Diag(a, cfg.get("diag", 0), 166)
    dc = Diag(a, cfg.get("diag2", 0), 167, cyc=cfg.get("cyc", 0))

    def fset(vaddr, vtmp, val, off=0, S=None):
        a("v_mov_b32 v%d, %d" % (vtmp, val))
        a("s_mov_b64 exec, 1")
        (S.emit if S else a)("ds_write_b32 v%d, v%d offset:%d" % (vaddr, vtmp, off))
        a("s_mov_b64 exec, -1")

    if dg.on: a("s_memrealtime s[96:97]")
    a("""
    s_load_dwordx4 s[4:7], s[0:1], 0
    s_load_dwordx2 s[8:9], s[0:1], 16
    s_load_dwordx8 s[60:67], s[0:1], 32
    s_load_dwordx4 s[68:71], s[0:1], 64
    s_load_dwordx2 s[72:73], s[0:1], 80
    s_cmp_ge_u32 s2, 256
    s_cbranch_scc1 F_end
    v_lshrrev_b32 v1, 6, v0
    v_and_b32 v0, 63, v0
    s_and_b32 s30, s2, 7         ; xcd
    v_readfirstlane_b32 s3, v1
    s_lshr_b32 s31, s2, 3
    s_and_b32 s36, s30, 1        ; half
    s_lshl_b32 s32, s36, 3
    s_and_b32 s35, s31, 7        ; ri
    s_add_u32 s32, s32, s35      ; i
    s_lshr_b32 s37, s30, 1       ; g
    s_lshl_b32 s33, s37, 2
    s_lshr_b32 s34, s31, 3       ; cj
    s_add_u32 s33, s33, s34      ; j
    s_add_u32 s10, s33, %d
    s_and_b32 s10, s10, 15       ; jq
    s_add_u32 s11, s35, s34
    s_and_b32 s11, s11, 3        ; class
    s_and_b32 s28, s32, 11
    s_and_b32 s29, s37, 1
    s_lshl_b32 s29, s29, 2
    s_add_u32 s28, s28, s29      ; i3 = 8*half + 4*(g&1) + (ri&3)
    s_lshr_b32 s29, s37, 1
    s_lshl_b32 s29, s29, 3
    s_and_b32 s38, s35, 4
    s_add_u32 s29, s29, s38
    s_add_u32 s38, s34, J3R
    s_and_b32 s38, s38, 3
    s_add_u32 s29, s29, s38      ; j3 = 8*(g>>1) + 4*(ri>>2) + ((cj+r)&3)
    """.replace("J3R", str(cfg.get("j3r", 1))) % cfg.get("qrot", 4))
    if LAT:
        a("s_lshl_b32 s11, s34, 1")
        a("s_add_u32 s11, s11, s35")
        a("s_and_b32 s11, s11, 7")
    if a.safe: a("s_mov_b32 s90, 0x40000")
    a("""
    s_mul_i32 s89, s36, %d
    s_mul_i32 s38, s37, %d
    s_add_u32 s89, s89, s38      ; kblock start
    """ % (8, cfg.get("kb", 2)))
    for c in range(len(KT)):
        lo = sum(KT[c][g] << (4 * g) for g in range(8)); hi = sum(KT[c][8 + g] << (4 * g) for g in range(8))
        if c: a("s_cmp_eq_u32 s11, %d" % c)
        a(("s_cselect_b32 s94, 0x%x, s94" if c else "s_mov_b32 s94, 0x%x") % lo)
        a(("s_cselect_b32 s95, 0x%x, s95" if c else "s_mov_b32 s95, 0x%x") % hi)
    a("s_cmp_ge_u32 s3, 8")
    a("s_cbranch_scc1 F_aux")
    a("s_cmp_ge_u32 s3, 4")
    a("s_cbranch_scc1 F_nl")
    a("""
    v_lshrrev_b32 v2, 3, v0          ; r
    v_and_b32 v3, 7, v0              ; c
    v_lshrrev_b32 v4, 1, v2          ; r>>1
    v_xor_b32 v5, v3, v4
    v_xor_b32 v6, 4, v5
    v_lshlrev_b32 v5, 4, v5
    v_lshlrev_b32 v6, 4, v6
    v_lshlrev_b32 v7, 11, v2
    v_add_u32 v5, v5, v7             ; A even instr
    v_add_u32 v6, v6, v7             ; A odd instr
    v_and_b32 v4, 1, v4
    v_lshlrev_b32 v4, 1, v4
    v_xor_b32 v8, v3, v4
    v_xor_b32 v9, 4, v8
    v_lshlrev_b32 v8, 4, v8
    v_lshlrev_b32 v9, 4, v9
    v_mul_u32_u24 v7, 6144, v2
    v_add_u32 v8, v8, v7             ; B first
    v_add_u32 v9, v9, v7
    v_add_u32 v9, 49152, v9          ; B second
    s_lshl_b32 s36, s32, 18
    s_lshl_b32 s37, s3, 16
    s_add_u32 s36, s36, s37          ; A soffset base (rows tile*128 + 32w)
    s_lshl_b32 s38, s33, 7           ; j*128
    s_mul_i32 s37, s3, %d
    s_add_u32 s38, s38, s37          ; B base: rows 16w..
    s_lshl_b32 s47, s10, 7
    s_add_u32 s47, s47, s37          ; B base for q
    s_lshl_b32 s44, s3, 12           ; lds base A per wave
    s_lshl_b32 s45, s3, 11           ; lds base B per wave
    s_add_u32 s43, s45, 1024
    s_mov_b32 s14, %d
    s_mov_b32 s15, 0x20000
    s_mov_b32 s18, %d
    s_mov_b32 s19, 0x20000
    s_waitcnt lgkmcnt(0)
    s_mov_b32 s12, s4
    s_mov_b32 s13, s5
    s_mov_b32 s16, s6
    s_mov_b32 s17, s7
    """ % (16 * 6144, 2048 * 2048, 1024 * 6144))
    cur = [None]
    def kb(g):
        if cur[0] != g:
            a("s_bfe_u32 s40, s%d, 0x%x" % (94 + g // 8, (4 << 16) | (4 * (g % 8))))
            a("s_add_u32 s40, s89, s40")
            a("s_and_b32 s40, s40, 15")
            a("s_mul_i32 s41, s40, %d" % (64 * 6144))
            a("s_lshl_b32 s40, s40, 7")
            a("s_add_u32 s40, s40, s36")
            a("s_add_u32 s42, s41, s47")
            a("s_add_u32 s41, s41, s38")
            cur[0] = g
    def dma(kind, g, i, gr):
        base = gr * G
        if kind == "S":
            if g == 0 and i == 0:
                a("s_lshl_b32 s51, s32, 4")
                a("s_add_u32 s51, s51, s33")
                a("s_lshl_b32 s51, s51, 14")
                a("s_add_u32 s51, s51, s45")
                a("v_lshlrev_b32 v165, 4, v0")
                a.srd(20, 60, 2048)
            if i == 2:
                a("s_and_b32 s46, s3, 1")
                a("s_lshl_b32 s46, s46, 10")
                a("s_add_u32 m0, s46, %d" % WRL)
                a("s_nop 0")
                a("buffer_load_dwordx4 v165, s[20:23], s46 offen lds")
                return
            a("s_add_u32 m0, s45, %d" % (base + i * 1024))
            a("s_add_u32 s46, s51, %d" % (g * 8192 + i * 1024))
            a("buffer_load_dwordx4 v165, s[12:15], s46 offen lds")
            return
        kb(g)
        if kind == "X":
            a("s_add_u32 m0, s44, %d" % (base + i * 1024))
            a("s_add_u32 s46, s40, %d" % (i * 8 * 2048))
            a("buffer_load_dwordx4 %s, s[12:15], s46 offen lds" % ("v6" if (i & 1) else "v5"))
        elif kind == "Q":
            a("s_add_u32 m0, s%d, %d" % (43 if i else 45, base))
            a("s_nop 0")
            a("buffer_load_dwordx4 %s, s[16:19], s42 offen lds" % ("v9" if i else "v8"))
        else:
            a("s_add_u32 m0, s%d, %d" % (43 if i else 45, base))
            a("s_add_u32 s46, s41, %d" % ("QKV".index(kind) * 2048))
            a("buffer_load_dwordx4 %s, s[16:19], s46 offen lds" % ("v9" if i else "v8"))
    seq = []
    for (k, g, t) in P["order"]:
        for i in range(4 if k == "X" else 3 if (k, g) == ("S", 0) else 2): seq.append((t, AL[(k, g)][1], k, g, i))
    for (k, g) in P["tail"]:
        for i in range(2): seq.append((99, AL[(k, g)][1], k, g, i))
    QA = 16
    def qacc(nb, rb): return QA + (rb * 4 + nb) * 4
    dg.t(0)
    a("s_setprio %d" % cfg.get("lprio0", 3))
    nxt = 0
    last = {}
    for i_, u in enumerate(seq): last[u[0]] = i_
    def issue_one(tdone):
        nonlocal nxt
        if nxt < len(seq) and seq[nxt][1] <= tdone:
            _, _, k, g, i = seq[nxt]
            dma(k, g, i, AL[(k, g)][0]); nxt += 1
            return True
        return False
    def issue_upto(n, tdone):
        while nxt < n and issue_one(tdone): pass
    issue_upto(cfg.get("pre", 15), -1)
    a("""
    v_and_b32 v1, 15, v0             ; row16
    v_lshrrev_b32 v7, 4, v0          ; q
    v_lshrrev_b32 v3, 1, v1
    v_xor_b32 v3, v3, v7
    v_lshlrev_b32 v3, 4, v3
    v_lshlrev_b32 v1, 7, v1
    v_add3_u32 v2, v1, v3, s44       ; A addr ks=0
    v_xor_b32 v3, 64, v2             ; ks=1
    v_add_u32 v14, 0x10000, v2
    v_add_u32 v15, 0x10000, v3
    v_bfe_u32 v1, v0, 2, 2           ; r
    v_lshl_add_u32 v4, v7, 3, v1     ; row = 8q + r
    v_lshrrev_b32 v1, 1, v1
    v_and_b32 v7, 1, v7
    v_lshl_add_u32 v1, v7, 1, v1     ; f(row)
    v_lshlrev_b32 v1, 5, v1
    v_lshl_add_u32 v1, v4, 7, v1
    v_and_b32 v7, 3, v0
    v_lshl_add_u32 v1, v7, 3, v1
    v_add_u32 v10, %d, v1            ; B addr nb=0, window 88K
    v_xor_b32 v11, 32, v10
    v_xor_b32 v12, 64, v10
    v_xor_b32 v13, 96, v10
    v_lshlrev_b32 v1, 2, v7
    v_add_u32 v1, %d, v1             ; 4-word flag read base
    s_lshl_b32 s50, s3, 2
    s_add_u32 s50, s50, %d
    v_mov_b32 v4, s50                ; own flag column
    v_mov_b32 v164, 1
    """ % (11 * G, FLG, FLG))
    BW2 = [5, 6, 8, 9]
    def rdA(gr, ks, rb, dst):
        base = gr * G
        w = base >= 65536
        return ["ds_read_b128 %s, v%d offset:%d" % (q4(dst), (14 if w else 2) + ks, base - w * 65536 + rb * 2048)]
    def rdB(gr, ks, nb, dst):
        if gr >= 11: r_, base = 10 + nb, (gr - 11) * G
        else: r_, base = BW2[nb], (gr - 8) * G
        return ["ds_read_b64_tr_b16 %s, v%d offset:%d" % (pr(dst + 2 * h), r_, base + ks * 4096 + h * 512) for h in range(2)]
    S = LgkmStream(a)
    firstq = [True]
    def qstream(steps, pool, PD, hook_mfma=None, gate=None, after_reads=None, eager=False):
        items = []
        slot = {}
        for n, (xg, ar, qg) in enumerate(steps):
            for ks in range(2):
                v = 2 * n + ks
                if ar is not None:
                    for rb in range(2): slot[(v, "A", rb)] = aslot[(ar, ks, rb)]
                    items += [(v, "B", nb) for nb in range(4)]
                else:
                    items += [(v, "A", 0), (v, "B", 0), (v, "A", 1), (v, "B", 1), (v, "B", 2), (v, "B", 3)]
        rq = []; ip = [0]; gated = set(); lastitem = {}
        for k, it in enumerate(items): lastitem[it[0] // 2] = k
        issued_at = {}
        cnt = [0]
        def feed(vcur, force=None):
            if ip[0] >= len(items): return False
            v, kind, idx = items[ip[0]]
            if force is None and (v > vcur + PD or not pool): return False
            n = v // 2
            if gate and n not in gated:
                for r in rq: S.emit(r)
                del rq[:]
                gate(n); gated.add(n)
            d = pool.pop(0)
            slot[(v, kind, idx)] = d
            xg, ar, qg = steps[n]
            rq.extend(rdA(xg, v % 2, idx, d) if kind == "A" else rdB(qg, v % 2, idx, d))
            if ip[0] == lastitem[n]: issued_at[n] = [cnt[0], d]
            ip[0] += 1
            return True
        def pump(vcur, k):
            for _ in range(k):
                if not rq and not feed(vcur): break
                S.emit(rq.pop(0))
        if eager:
            while feed(99) or rq: S.emit(rq.pop(0))
        else:
            pump(0, cfg.get("qpre", 12))
        sig = 0
        for v in range(2 * len(steps)):
            for nb in range(4):
                for rb in range(2):
                    while (v, "B", nb) not in slot or (v, "A", rb) not in slot: feed(v, force=True)
                    need = {slot[(v, "B", nb)], slot[(v, "A", rb)]}
                    while any(("%s," % q4(d)) in r or ("%s," % pr(d)) in r or ("%s," % pr(d + 2)) in r for d in need for r in rq): S.emit(rq.pop(0))
                    S.emit(mfma16(qacc(nb, rb), slot[(v, "B", nb)], slot[(v, "A", rb)], firstq[0] and v == 0))
                    cnt[0] += 1
                    if rb == 1: pool.append(slot[(v, "B", nb)])
                    if nb == 3: pool.append(slot[(v, "A", rb)])
                    pump(v, 2 if (cnt[0] % 2 == 0) else 1)
                    if after_reads and sig in issued_at and not rq_has(rq, issued_at[sig][1]) and cnt[0] >= issued_at[sig][0] + cfg.get("cpl", 6):
                        S.require({"v%d" % (issued_at[sig][1] + 3)})
                        after_reads(sig); sig += 1
                    if hook_mfma: hook_mfma(v, nb * 2 + rb)
        while after_reads and sig < len(steps):
            S.require({"v%d" % (issued_at[sig][1] + 3)})
            after_reads(sig); sig += 1
        firstq[0] = False
    def rq_has(rq, d): return any(("%s," % q4(d)) in r or ("%s," % pr(d)) in r or ("%s," % pr(d + 2)) in r for r in rq)
    a("; @@PRI:e:1@@")
    STEP = cfg.get("step", 10)
    n1 = 0
    pool = [48 + 4 * k for k in range(29)]
    aslot = {}; bsl = {}; pend = []
    for t in range(17):
        need = last[min(t, 15)]
        issue_upto(need + 1, t - 1)
        assert nxt > need
        if t == 16:
            need = max(need, mark15 - 1)
            n1 = (need - last[15]) // 2
        w = ["vmcnt(%d)" % (nxt - need - 1)]
        if S.pend: w.append("lgkmcnt(0)"); S.pend = []
        a("s_waitcnt " + " ".join(w))
        if t == 15: mark15 = nxt
        if cfg.get("diag2") == 5:
            if t < 16: dc.t(t)
        elif t in (0, 3, 15): dg.t({0: 1, 3: 2, 15: 3}[t])
        a("s_barrier")
        lim = nxt + STEP
        if nxt > last[15]: lim = nxt + cfg.get("tstep", 2)
        elif lim > last[15] + 1: lim = min(lim, last[15] + 1 + cfg.get("tstep0", 0))
        mq = [(k_, nb, rb) for k_ in pend for nb in range(4) for rb in range(2)]
        rl = []
        if t < 16:
            pk = [("A", (t, ks, rb)) for ks in range(2) for rb in range(2)] if t < 16 - len(P["ret"]) else []
            br = [("B", (g, ks, nb)) for (g, ks) in P["drains"][t] for nb in range(4)]
            while pk or br:
                if br: rl.append(br.pop(0))
                if pk: rl.append(pk.pop(0))
        issue_upto(min(lim, nxt + cfg.get("nd0", 1)), t)
        MPR = cfg.get("mpr", 1); RPR = cfg.get("rpr", 1)
        while mq or rl:
            prog_ = False
            for _ in range(MPR):
                if mq:
                    (g, ks), nb, rb = mq.pop(0)
                    S.emit(mfma16(qacc(nb, rb), bsl[(g, ks, nb)], aslot[(g, ks, rb)], (g, ks) == (0, 0)))
                    if rb == 1: pool.append(bsl[(g, ks, nb)])
                    if nb == 3: pool.append(aslot[(g, ks, rb)])
                    prog_ = True
            for _ in range(RPR):
                if rl and pool:
                    kind, key = rl.pop(0)
                    d = pool.pop(0)
                    if kind == "A":
                        aslot[key] = d
                        S.emit(rdA(AL[("X", t)][0], key[1], key[2], d)[0])
                    else:
                        bsl[key] = d
                        for r in rdB(AL[("Q", key[0])][0], key[1], key[2], d): S.emit(r)
                    prog_ = True
            assert prog_, ("out of registers", t)
            if nxt < lim: issue_one(t)
        pend = list(P["drains"][t]) if t < 16 else []
        if pend: firstq[0] = False
        if t < 16: issue_upto(lim, t)
    while nxt < len(seq):
        if cfg.get("tthr") is not None and (len(seq) - nxt) % 2 == 0: a("s_waitcnt vmcnt(%d)" % cfg["tthr"])
        if len(seq) - nxt == 2 * cfg.get("tlate", 0): flag_wait(a, 7, 1, cfg.get("tlf", 1), sleep=1, off=F_KX - FLG)
        assert issue_one(16)
    if cfg.get("p1only"):
        a("s_waitcnt vmcnt(0)")
        dg.t(4)
        a("s_cmp_lg_u32 s3, 0")
        a("s_cbranch_scc1 F_end")
        (dc if cfg.get("diag2") == 5 else dg).out(1)
        a("s_endpgm")
    a("; @@PRI:l:2:DENS@@")
    a("s_setprio %d" % cfg.get("lprio", 1))
    for nb in range(4): a("v_subrev_u32 v%d, %d, v%d" % (BW2[nb], 3 * G, 10 + nb))
    a.srd(16, 72, 4 * MB, O_OFF)
    a.srd(24, 72, ZB, KV_OFF)
    if cfg.get("qs", 1):
        flag_wait(a, 7, 1, cfg.get("qs", 1), sleep=2, off=F_KX - FLG)
    dg.t(4)
    steps = [(P["xs"].get(n), None if n in P["xs"] else QO[n], P["qs"][n]) for n in range(NST)]
    assert len(pool) >= 4
    lqset = [False]
    TL_ = cfg.get("tlate", 0)
    lev = [(n1, 2 * TL_)] + ([(P["nq0"] - TL_, 0)] if TL_ else [])
    lqn = [0]
    def gate(n):
        for k_, (n0, vm_) in enumerate(lev):
            if n0 >= P["nq0"]: continue
            if n + cfg.get("lqa", 2) >= n0 and lqn[0] == k_:
                a("s_waitcnt vmcnt(%d)" % vm_)
                a("s_mov_b64 exec, 1")
                S.emit("ds_add_u32 v4, v164 offset:%d" % (F_LQ - FLG))
                a("s_mov_b64 exec, -1")
                lqn[0] += 1
            if n == n0: flag_wait(a, 7, 1, k_ + 1, off=F_LQ - FLG, S=S)
        if n == P["nq0"]: flag_wait(a, 7, 1, 1, off=F_LP - FLG, S=S)
    def prog(n):
        a("s_mov_b64 exec, 1")
        S.emit("ds_add_u32 v4, v164 offset:%d" % (F_CP - FLG))
        a("s_mov_b64 exec, -1")
    def hk2(v, k):
        if cfg.get("diag2") == 2 and v % 2 == 1 and k == 7: dc.t(v // 2, S)
    qstream(steps, pool, cfg.get("pdq", 2), hook_mfma=hk2, gate=gate, after_reads=prog)
    dg.t(5, S)
    a("s_setprio %d" % cfg.get("lprio2", 3))
    TQ = 48; TMP = 80; QP = 112; KF = 128
    a("""
    s_mov_b32 s40, 0x%x              ; 2^-60 / log2e
    s_mov_b32 s41, s40
    s_mov_b32 s74, 0x%x              ; eps
    s_mov_b32 s75, s74
    s_mov_b32 s76, 0x%x              ; 2^60
    s_mov_b32 s77, s76
    v_and_b32 v2, 15, v0
    v_lshlrev_b32 v2, 2, v2
    s_lshl_b32 s42, s3, 7
    s_add_u32 s42, s42, %d
    v_add_u32 v2, s42, v2            ; row tables by lane row
    v_add_u32 v3, 1024, v2
    v_and_b32 v5, 0x30, v0
    v_add_u32 v5, %d, v5             ; CL q cols
    """ % (f32(2.0 ** -60 / 1.4426950408889634), EPS6, f32(2.0 ** 60), NML, CL))
    if not cfg.get("qs", 1):
        S.drain()
        flag_wait(a, 7, 1, 1, off=F_KX - FLG, S=S)
    for rb in range(2):
        S.emit("ds_read2_b32 %s, v2 offset0:%d offset1:%d" % (pr(TQ + 2 * rb), rb * 16, rb * 16))
    for nb in range(4):
        S.emit("ds_read_b128 %s, v5 offset:%d" % (q4(TQ + 8 + 4 * nb), nb * 64))
    for rb in range(2):
        S.emit("ds_read2_b32 %s, v3 offset0:%d offset1:%d" % (pr(TQ + 4 + 2 * rb), rb * 16, rb * 16))
    a("""
    v_lshlrev_b32 v6, 4, v0
    v_lshlrev_b32 v8, 2, v0
    v_add_u32 v8, %d, v8             ; KVA addr
    s_lshl_b32 s79, s32, 18
    s_lshl_b32 s80, s3, 16
    s_add_u32 s79, s79, s80
    s_lshl_b32 s80, s10, 11
    s_add_u32 s79, s79, s80          ; o store base rb=0
    s_add_u32 s80, s79, 0x8000
    s_lshl_b32 s45, s32, 2
    s_add_u32 s45, s45, s3
    s_lshl_b32 s45, s45, 9           ; o counters [i][w][*]
    s_mov_b32 s46, 0x%x
    v_mov_b32 v11, 0x%x
    """ % (KX, LOG2E, f32(1e-6 * 1.4426950408889634)))
    s_addr(a, 54, 45, KV_OFF + R_O)
    for nb in range(4):
        for rb in range(2):
            d = qacc(nb, rb)
            for h in (0, 2):
                S.emit("v_pk_fma_f32 %s, %s, %s, %s" % (pr(d + h), pr(TQ + 8 + 4 * nb + h), pr(TQ + 2 * rb), pr(d + h)))
    for rb in range(2):
        for nb in range(4):
            d = qacc(nb, rb)
            for h in (0, 2):
                S.emit("v_pk_mul_f32 %s, %s, %s" % (pr(d + h), pr(d + h), pr(TQ + 4 + 2 * rb)))
    for x_ in phi([QA + 2 * i for i in range(16)], TMP): a(x_)
    for x_ in pack_list(QP, QA, 32): a(x_)
    S.drain()
    dg.t(6)
    KR = [16, 40]
    def kvreads(hh):
        for db in range(2):
            a("ds_read_b128 %s, v5 offset:%d" % (q4(KR[hh] + 16 + 4 * db), hh * 128 + db * 64))
        for t_ in range(4):
            for r in (0, 2):
                o_ = (hh * 2048 + (t_ >> 1) * 4096 + (t_ & 1) * 1024) // 256 + r
                a("ds_read2st64_b32 %s, v8 offset0:%d offset1:%d" % (pr(KR[hh] + 4 * t_ + r), o_, o_ + 1))
    a("v_and_b32 v9, 0xfffffff7, v1")
    a("v_and_b32 v5, 0x30, v0")
    a("v_add_u32 v5, %d, v5" % ZX)
    if cfg.get("ga", 0): a("v_add_u32 v5, %d, v6" % KX)
    flag_wait(a, 7, 9, 1, sleep=cfg.get("kws", 1), off=F_KV - FLG)
    flag_wait(a, 7, 9, 2, sleep=0, off=F_KV - FLG)
    dg.t(7)
    def nd(u): return 64 + 12 * u
    OP = 152
    if cfg.get("ga", 0):
        for hh in range(2):
            a("ds_read_b128 %s, v5 offset:%d" % (q4(KF + 12 * hh + 8), (hh + 2) * 2048))
            for eb in range(2):
                a("ds_read_b128 %s, v5 offset:%d" % (q4(KF + 12 * hh + 4 * eb), hh * 2048 + eb * 1024))
        for hh in range(2):
            a("s_waitcnt lgkmcnt(%d)" % (3 if hh == 0 else 0))
            for rb in range(2):
                for j in (2, 0, 1):
                    a(mfma16(nd(2 * hh + rb) + 4 * j, KF + 12 * hh + 4 * j, QP + 8 * rb + 4 * hh, True))
    else:
        kvreads(0)
        a("s_waitcnt lgkmcnt(5)")
        kvreads(1)
        for hh in range(2):
            a("s_waitcnt lgkmcnt(%d)" % (10 if hh == 0 else 0))
            for x_ in pack_list(KF + 12 * hh, KR[hh], 24): a(x_)
            for rb in range(2):
                for j in (2, 0, 1):
                    a(mfma16(nd(2 * hh + rb) + 4 * j, KF + 12 * hh + 4 * j, QP + 8 * rb + 4 * hh, True))
    for u in range(4):
        hh, rb = u >> 1, u & 1
        d = nd(u)
        a("v_fma_f32 v%d, v%d, s46, v11" % (d + 8, d + 8))
        a("v_rcp_f32 v%d, v%d" % (d + 8, d + 8))
        for i in range(8):
            a("v_mul_f32 v%d, v%d, v%d" % (d + i, d + i, d + 8))
        for x_ in pack_list(16 + 4 * u, d, 8): a(x_)
        a("buffer_store_dwordx4 %s, v6, s[16:19], s%d offen offset:%d sc0 sc1" % (q4(16 + 4 * u), 79 + rb, hh * 1024))
    dg.t(8)
    a("s_mov_b64 exec, 1")
    a("ds_write_b32 v4, v164 offset:%d" % (F_OA - FLG))
    a("s_waitcnt vmcnt(0)")
    s_signal(a, 54, 45)
    a("ds_add_u32 v4, v164 offset:%d" % (F_OA - FLG))
    a("s_mov_b64 exec, -1")
    dg.t(9)
    a("s_cmp_lg_u32 s3, 0")
    a("s_cbranch_scc1 F_end")
    a("s_setprio 0")
    a("s_lshr_b32 s50, s29, 1")
    a("s_lshl_b32 s50, s50, 2")
    a("s_and_b32 s51, s28, 3")
    a("s_add_u32 s50, s50, s51")
    a("s_lshl_b32 s50, s50, 7")
    s_addr(a, 56, 50, KV_OFF + R_Y)
    a("v_mov_b32 v2, %d" % (F_SC + 8))
    flag_wait(a, 7, 2, 1, sleep=2)
    a("""
    v_and_b32 v2, 7, v0
    v_lshlrev_b32 v2, 2, v2
    v_add_u32 v2, %d, v2
    ds_read_b32 v2, v2
    s_sub_u32 s51, 15, s28
    s_waitcnt lgkmcnt(0)
    v_bfe_u32 v2, v2, 7, 4
    v_cmp_eq_u32 vcc, s51, v2
    s_cbranch_vccz F_ny
    """ % SELL)
    a("""
    v_lshrrev_b32 v2, 4, v0
    v_and_b32 v6, 15, v0
    v_lshlrev_b32 v6, 4, v6
    v_lshl_add_u32 v2, v2, 12, v6
    s_lshl_b32 s50, s29, 8
    s_add_u32 s50, s50, %d
    """ % Y_REL)
    s_poll(a, 56, 0 if cfg.get("nochain") else 32, 58, sleep=cfg.get("ys", 4))
    a("s_mov_b32 m0, %d" % YL)
    a("s_nop 0")
    a("buffer_load_dwordx4 v2, s[24:27], s50 offen sc0 sc1 lds")
    a("s_add_u32 s50, s50, 16384")
    a("s_add_u32 m0, m0, 1024")
    a("s_nop 0")
    a("buffer_load_dwordx4 v2, s[24:27], s50 offen sc0 sc1 lds")
    a("s_waitcnt vmcnt(0)")
    fset(4, 7, 1, off=F_Y - FLG)
    a("F_ny:")
    dg.t(10)
    dg.out(1)
    if cfg.get("diag2") == 2: dc.out(3)
    a("F_end:")
    a("s_endpgm")

    a("; @@PRI:-:0@@")
    a("F_nl:")
    a("s_sub_u32 s3, s3, 4")
    import g4c, g4a
    env = dict(cfg=cfg, P=P, AL=AL, QO=QO, NST=NST, KT=KT, CST=CST, MS=MS, KX=KX, NT=NT, dg=dg, dc=dc, fset=fset, name=name)
    g4c.compute(a, env)
    g4a.aux(a, env)
    a("F_codeend:")
    a.end_kernel(name, 168, 98)


def build(cfg, path):
    a = Asm()
    gen(a, cfg)
    a.lines = hazard.pad(a.lines, verbose=True)
    hdr = open(os.path.join(os.path.dirname(os.path.abspath(__file__)), "..", NAME + ".s.ref")).read().split("; Override")[0]
    txt = a.text(hdr)
    txt = txt.replace("; @launch kernel=%s_kernel grid" % NAME, "; @launch grid")
    if cfg.get("al12", 1): txt = txt.replace(".p2align 8\n", ".p2align 12\n.p2align 8\n", 1)
    import iwarm
    txt = txt.replace("DENS", str(cfg.get("dens", 768)))
    txt = iwarm.process(txt, NAME + "_kernel", stubs=cfg.get("iw", 1), align=cfg.get("align", 3))
    open(path, "w").write(txt)


if __name__ == "__main__":
    sys.modules["g4"] = sys.modules["__main__"]
    cfg = dict(cap=12, ss=1, xp=0, msc=2, tw=2, rot=4, rotb=1, wd=3, selwg=248, step=11, nd=16, nsw=1, de=1, swp=4, align=8, dens=4096, kdf=1, me13=4, me14=4, me15=0, mg8=102)
    out = "/code/" + NAME + ".s"
    for arg in sys.argv[1:]:
        if "=" in arg:
            k, v = arg.split("=")
            cfg[k] = int(v, 0)
        else:
            out = arg
    build(cfg, out)
```

```python
INF = 99

def allocate(DR, R, NG=19, nxe=4, MSC=6, NQ0=99, SS=1, SF=2, KVA=1, verbose=False):
    drains = {}
    v = 0
    for t in range(16):
        drains[t] = []
        for _ in range(DR[t]):
            assert v // 2 <= t and v // 2 < 16 - R
            drains[t].append((v // 2, v % 2)); v += 1
    assert v % 2 == 0
    nd = v // 2
    qfirst = {g: min(t for t in drains if (g, 0) in drains[t]) for g in range(nd)}
    qlast = {g: min(t for t in drains if (g, 1) in drains[t]) for g in range(nd)}
    avail = [-1] * NG
    res = {}
    order = []
    for t in range(16):
        pre = [("Q", g, t) for g in range(nd) if qfirst[g] == t and g == 0 and t > 0]
        if t == SS and t > 0: pre = [("S", 0, t), ("S", 1, t)] + pre
        order += pre + [("X", t, t), ("K", t, t), ("V", t, t)]
        if t == SS == 0: order += [("S", 0, t), ("S", 1, t)]
        order += [("Q", g, t) for g in range(nd) if qfirst[g] == t and ("Q", g, t) not in pre]
    ret = list(range(16 - R, 16))
    parked = list(range(nd, 16 - R))
    qorder = parked[:1] + ret + parked[1:]
    npair = max(nxe, R)
    nq0 = min(len(qorder), NG - 2 * npair - 1, NQ0)
    last_after = -1
    def place(kind, t, fr):
        nonlocal last_after
        hold = fr == INF
        if kind == "X":
            lim = npair if hold else nxe
            best = min(range(lim), key=lambda p: (max(avail[2 * p], avail[2 * p + 1], last_after), -p if hold else p))
            af = max(avail[2 * best], avail[2 * best + 1])
            avail[2 * best] = avail[2 * best + 1] = fr
            gr = 2 * best
        else:
            lo = 2 * nxe if t < 16 - R - 2 else 2 * npair
            lo = max(lo, 11 if (kind == "Q" and not hold) else 8)
            cands = [c for c in range(lo, NG) if avail[c] < INF]
            best = min(cands, key=lambda c: (max(avail[c], last_after), (-c if kind == "Q" else c)))
            af = avail[best]
            avail[best] = fr
            gr = best
        last_after = max(last_after, af)
        return gr, last_after
    for (kind, g, t) in order:
        fr = INF if (kind == "X" and g in ret) else (qlast[g] + 1 if kind == "Q" else SF if kind == "S" else g + 1)
        res[(kind, g)] = place(kind, t, fr)
        assert res[(kind, g)][1] < t or t == 0, (kind, g, t, res[(kind, g)])
    tail = []
    for g in qorder[:nq0]:
        res[("Q", g)] = place("Q", 99, INF); tail.append(("Q", g))
    rest = [c for c in range(NG) if avail[c] < INF]
    kx = rest[-1]
    nst = len(qorder)
    free = {c: 0 for c in rest}
    xs = {n: res[("X", g)][0] for n, g in enumerate(qorder) if g in ret}
    qs = {n: res[("Q", g)][0] for n, g in enumerate(qorder[:nq0])}
    for n in xs: free[xs[n]] = n + 1; free[xs[n] + 1] = n + 1
    for n in qs: free[qs[n]] = n + 1
    del free[kx]
    acts = []
    resv = {}
    if MSC == 0:
        z = sorted(c for c in free if free[c] == 0)
        if len(z) >= 2:
            pr_ = min(((x, y) for x in z for y in z if x < y), key=lambda p: p[1] - p[0])
            for c in pr_: resv[c] = free.pop(c)
    for n in range(nq0, nst):
        gr = min((c for c in free if c >= 8), key=lambda c: (free[c], c))
        acts.append((free[gr], "wq", n, gr)); qs[n] = gr
        free[gr] = n + 1
    free.update(resv)
    wos = sorted(free.items(), key=lambda x: (x[1], x[0]))
    cand = [x for x in wos if x[1] <= MSC]
    if len(cand) < 2: cand = wos[:3]
    best = max(((x, y) for x in cand for y in cand if x[0] < y[0] <= x[0] + 6), key=lambda p: min(p[0][1], p[1][1]))
    kva = kx; kva_at = 0
    if KVA:
        m1 = max((x for x in cand if abs(x[0] - kx) <= 6), key=lambda x: x[1])
        k1 = max((x for x in cand if x != m1), key=lambda x: x[1])
        best = (m1, k1)
        ms = tuple(sorted((m1[0], kx))); ms_at = max(m1[1], 1)
        kva, kva_at = k1
    else:
        ms = (best[0][0], best[1][0]); ms_at = max(best[0][1], best[1][1])
    wos = [x for x in wos if x not in best]
    assert len(wos) >= 16, len(wos)
    wo = {}
    for m in range(16):
        acts.append((wos[m][1], "wo", m, wos[m][0])); wo[m] = wos[m][0]
    out = dict(order=order, tail=tail, res=res, qorder=qorder, parked=parked, ret=ret, kx=kx, xs=xs, qs=qs, wo=wo, ms=ms, ms_at=ms_at, kva=kva, kva_at=kva_at, acts=acts, nq0=nq0, drains=drains, qfirst=qfirst)
    if verbose:
        print(" ".join("%s%d:%d@%d" % (k, g, res[(k, g)][0], res[(k, g)][1]) for k, g in [x[:2] for x in order] + tail))
        print("qorder", qorder, "kx", kx, "ms", ms, ms_at, "kva", kva, kva_at)
        print(" ".join("%d:%s%d>%d" % x for x in acts))
    return out

if __name__ == "__main__":
    allocate([1] * 12 + [0] * 4, 4, verbose=True)
    allocate([0] + [1] * 10 + [0] * 5, 5, verbose=True)
```

```python
import sys, os
sys.path.insert(0, os.path.dirname(os.path.abspath(__file__)))
from asmlib import Asm
from sched import LgkmStream
import hazard

NAME = "parallel_sum__linear_attn_block__moe_arch_mod__prompt"
MB = 1 << 20
G = 8192
LOG2E = 0x3fb8aa3b
EPS6 = 0x358637bd
EPS5 = 0x3727c5ac
DIAG_OFF = 12 * MB


class Diag:
    def __init__(self, a, on, vreg, cyc=0):
        self.a = a; self.on = on; self.v = vreg; self.cyc = cyc
    def t(self, i, S=None):
        if getattr(self, "mark", None) == i:
            a = self.a
            a("s_memrealtime s[92:93]")
            a("s_waitcnt lgkmcnt(0)")
            a("s_sub_u32 s95, s92, s96")
            if S: S.pend = []
        if self.on:
            a = self.a
            a("s_memtime s[92:93]" if self.cyc else "s_memrealtime s[92:93]")
            a("s_waitcnt lgkmcnt(0)")
            a("v_writelane_b32 v%d, s92, %d" % (self.v, i))
            if S: S.pend = []
    def out(self, tab):
        if self.on:
            a = self.a
            a.srd(84, 72, MB, DIAG_OFF + 65536 + tab * 16384)
            a("s_lshl_b32 s92, s2, 6")
            a("s_mov_b64 exec, 0xffff")
            a("v_lshlrev_b32 v1, 2, v0")
            a("buffer_store_dword v%d, v1, s[84:87], s92 offen" % self.v)


def spin_guard(a):
    if getattr(a, "safe", None):
        a.nguard = getattr(a, "nguard", 0) + 1
        a("s_sub_u32 s90, s90, 1")
        a("s_cbranch_scc1 GF_%d" % a.nguard)


def flag_wait(a, vf, vaddr, need, sleep=0, off=0, S=None):
    lab = a.label("FW"); lab2 = a.label("FO")
    rd = "ds_read_b32 v%d, v%d offset:%d" % (vf, vaddr, off)
    a(rd)
    a("%s:" % lab)
    spin_guard(a)
    a("s_waitcnt lgkmcnt(0)")
    a("v_cmp_gt_u32 vcc, %s, v%d" % (need, vf))
    a("s_cbranch_vccz %s" % lab2)
    if sleep: a("s_sleep %d" % sleep)
    a(rd)
    a("s_branch %s" % lab)
    a("%s:" % lab2)
    if S: S.pend = []


def s_poll(a, sb, target, stmp, sleep=1, off=0):
    lab = a.label("SP"); lab2 = a.label("SD")
    a("%s:" % lab)
    spin_guard(a)
    a("s_load_dword s%d, s[%d:%d], %d glc" % (stmp, sb, sb + 1, off))
    a("s_waitcnt lgkmcnt(0)")
    a("s_cmp_ge_u32 s%d, %d" % (stmp, target))
    a("s_cbranch_scc1 %s" % lab2)
    if sleep: a("s_sleep %d" % sleep)
    a("s_branch %s" % lab)
    a("%s:" % lab2)


def s_addr(a, sb, soff, const):
    a("s_add_u32 s%d, s%d, 0x%x" % (sb, soff, const))
    a("s_add_u32 s%d, s72, s%d" % (sb, sb))
    a("s_addc_u32 s%d, s73, 0" % (sb + 1))


def wave_reduce(a, op, v, s):
    for m in ("row_shr:1", "row_shr:2", "row_shr:4", "row_shr:8"):
        a("%s_dpp v%d, v%d, v%d %s row_mask:0xf bank_mask:0xf bound_ctrl:0" % (op, v, v, v, m))
    a("%s_dpp v%d, v%d, v%d row_bcast:15 row_mask:0xa bank_mask:0xf" % (op, v, v, v))
    a("%s_dpp v%d, v%d, v%d row_bcast:31 row_mask:0xc bank_mask:0xf" % (op, v, v, v))
    a("v_readlane_b32 s%d, v%d, 63" % (s, v))


def class_tables(I=2, d0=1, dl=1):
    tabs = [[c % I] for c in range(4)]
    intro = {b: 0 for b in range(I)}
    nxt = I
    for s in range(1, 16):
        for c in range(4):
            if s >= d0 and c == s % 4 and nxt < 16:
                tabs[c].append(nxt); intro[nxt] = s; nxt += 1; continue
            av = [b for b in sorted(intro, key=lambda b: (intro[b], (b - c) % I if b < I else b)) if b not in tabs[c] and (intro[b] <= s - dl or intro[b] == 0)]
            if not av:
                av = [b for b in sorted(intro) if b not in tabs[c]]
            if not av:
                av = [nxt]; intro[nxt] = s; nxt += 1
            tabs[c].append(av[0])
    for t in tabs: assert sorted(t) == list(range(16)), t
    import itertools
    best = None
    for perm in itertools.permutations(range(8)):
        st = [tabs[k & 3].index(perm[k]) for k in range(8)]
        if best is None or (max(st), sum(st)) < (max(best), sum(best)): best = st
    return tabs, best


def pr(r): return "v[%d:%d]" % (r, r + 1)
def q4(r): return "v[%d:%d]" % (r, r + 3)
def pack_list(dst, b, n):
    return ["v_cvt_pk_bf16_f32 v%d, v%d, v%d" % (dst + i, b + 2 * i, b + 2 * i + 1) for i in range(n // 2)]
def mfma16(d, A, B, first):
    return "v_mfma_f32_16x16x32_bf16 %s, %s, %s, %s" % (q4(d), q4(A), q4(B), "0" if first else q4(d))


def f32(x):
    import struct
    return struct.unpack("<I", struct.pack("<f", x))[0]


def phi(regs, tmp):
    out = []
    for i, d in enumerate(regs):
        out += ["v_exp_f32 v%d, v%d clamp" % (tmp + 2 * i + h, d + h) for h in range(2)]
    out += ["v_pk_mul_f32 %s, %s, s[40:41] clamp" % (pr(d), pr(d)) for d in regs]
    out += ["v_pk_add_f32 %s, %s, s[74:75]" % (pr(tmp + 2 * i), pr(tmp + 2 * i)) for i in range(len(regs))]
    out += ["v_pk_fma_f32 %s, %s, s[76:77], %s" % (pr(d), pr(d), pr(tmp + 2 * i)) for i, d in enumerate(regs)]
    return out


def latin_tables(d0=1, dl=1, order=0):
    tabs = [[c] for c in range(8)]
    for p in range(2):
        own = [p + 2 * k for k in range(4)]; oth = [1 - p + 2 * k for k in range(4)]
        if order == 0: new = oth + [8 + b for b in own] + [8 + b for b in oth]
        else: new = [8 + b for b in own] + oth + [8 + b for b in oth]
        intro = {b: 0 for b in own}
        for s_ in range(1, 16):
            for k, c in enumerate(own):
                if s_ >= d0 and k == s_ % 4 and new:
                    b = new.pop(0); tabs[c].append(b); intro[b] = s_; continue
                av = [b for b in sorted(intro, key=lambda b: (intro[b], (b - c) % 8)) if b not in tabs[c] and (intro[b] <= s_ - dl or intro[b] == 0)]
                if not av: av = [b for b in sorted(intro) if b not in tabs[c]]
                if not av:
                    b = new.pop(0); intro[b] = s_; av = [b]
                tabs[c].append(av[0])
    for t in tabs: assert sorted(t) == list(range(16)), t
    return tabs, [0] * 8


def s_signal(a, sb, stmp, n=4, stride=128):
    a("s_mov_b32 s%d, 1" % stmp)
    for k in range(n): a("s_atomic_add s%d, s[%d:%d], 0x%x" % (stmp, sb, sb + 1, k * stride))


def s_poll_pipe(a, sb, target, stmp, sleep=3, inner=None):
    lab = a.label("PP")
    a("s_waitcnt lgkmcnt(0)")
    a("s_mov_b32 s%d, 0" % stmp)
    a("%s:" % lab)
    spin_guard(a)
    a("s_load_dword s%d, s[%d:%d], 0 glc" % (stmp, sb, sb + 1))
    if inner: inner()
    for k in range(sleep):
        a("s_sleep 1")
        a("s_cmp_ge_u32 s%d, %d" % (stmp, target))
        a("s_cbranch_scc1 %sx" % lab)
    a("s_waitcnt lgkmcnt(10)")
    a("s_branch %s" % lab)
    a("%sx:" % lab)


def guard_stubs(a):
    for k in range(1, getattr(a, "nguard", 0) + 1):
        a("GF_%d:" % k)
        a("s_mov_b32 s91, %d" % (1 << (16 * (k & 1))))
        a("s_atomic_add s91, s[70:71], %d" % (64 + 4 * (k >> 1)))
        a("s_waitcnt lgkmcnt(0)")
        a("s_endpgm")
```

```python
from common import *


def aux(a, env):
    import g4 as M
    cfg = env["cfg"]; P = env["P"]; AL = env["AL"]
    dg = env["dg"]; fset = env["fset"]; MS = env["MS"]; NT = env["NT"]; name = env["name"]
    C_PRE = M.C_PRE
    assert C_PRE + 28 * 512 <= M.R_KV
    QF = P["qfirst"][0]
    assert QF <= 1
    AB = cfg.get("abl", 0)
    XS = 16; WS = 32
    RECL = M.YL
    a("; @@PRI:-:0@@")
    a("F_aux:")
    a("s_setprio %d" % cfg.get("aprio0", 3))
    a("""
    s_sub_u32 s3, s3, 8
    s_mov_b32 s88, s3                ; == 2 while the selection still has to be copied to LDS
    v_lshrrev_b32 v5, 4, v0          ; q
    s_cmp_eq_u32 s3, 1
    s_mov_b32 s45, %d
    s_cselect_b32 s45, %d, s45
    s_cmp_eq_u32 s3, 2
    s_cselect_b32 s45, %d, s45
    v_bfe_u32 v60, v0, 2, 2          ; r
    v_lshl_add_u32 v62, v5, 3, v60   ; row = 8q + r
    v_lshrrev_b32 v60, 1, v60
    v_and_b32 v63, 1, v5
    v_lshl_add_u32 v60, v63, 1, v60  ; f
    v_lshlrev_b32 v60, 5, v60
    v_lshl_add_u32 v60, v62, 7, v60
    v_and_b32 v63, 3, v0
    v_lshl_add_u32 v60, v63, 3, v60
    v_add_u32 v62, s45, v60
    v_xor_b32 v63, 32, v62
    v_xor_b32 v64, 64, v62
    v_xor_b32 v65, 96, v62
    v_lshlrev_b32 v2, 4, v0
    v_lshlrev_b32 v3, 2, v0
    v_and_b32 v7, 15, v0             ; c
    v_and_b32 v8, 7, v0
    v_lshlrev_b32 v8, 4, v8
    v_lshl_add_u32 v8, v5, 7, v8     ; w_r voffset: q*128 + kappa*16
    v_bfe_u32 v9, v0, 3, 1
    v_lshl_add_u32 v4, v9, 11, v8    ; x voffset
    v_and_b32 v9, 1, v0              ; row select: lane 0 / lane 1
    v_lshlrev_b32 v59, 2, v7
    s_lshl_b32 s76, s32, 4
    s_add_u32 s76, s76, s33          ; record id
    s_lshl_b32 s77, s76, 3
    s_lshl_b32 s44, s3, 1
    s_add_u32 s77, s77, s44          ; first row
    v_mov_b32 v12, 0
    v_mov_b32 v13, 0
    v_mov_b32 v14, 0
    v_mov_b32 v15, 0
    s_lshl_b32 s75, s3, 4
    s_add_u32 s75, s75, s33          ; == 0 <=> wave 0 and j == 0 : leader
    s_lshl_b32 s44, s3, 2
    s_add_u32 s44, s44, %d
    v_mov_b32 v10, s44               ; own flag column (FLG + 4x)
    """ % (AL[("V", 0)][0] * G, AL[("K", 0)][0] * G, AL[("Q", 0)][0] * G, M.FLG))
    for i in range(16): a("v_mov_b32 v%d, 0x3f803f80" % (WS + i))
    a("s_waitcnt lgkmcnt(0)")
    dg.t(0)
    a.srd(20, 4, 2048 * 2048)
    a("s_mov_b32 s19, 0x20000")
    a.srd(40, 72, 32768 + 8192 + 12288, M.KEY_OFF)
    if not AB & 4:
        a("""
        s_cmp_lg_u32 s3, 0
        s_cbranch_scc1 F_z0
        s_getpc_b64 s[46:47]
        F_pc:
        s_sub_u32 s46, s46, F_pc-%s
        s_subb_u32 s47, s47, 0
        s_and_b32 s44, s31, 7
        s_lshl_b32 s44, s44, 13
        v_lshlrev_b32 v67, 7, v0
        v_add_u32 v67, s44, v67
        v_min_u32 v67, F_codeend-%s-4, v67
        global_load_dword v61, v67, s[46:47]
        s_cmp_lg_u32 s75, 0
        s_cbranch_scc1 F_z0
        s_lshl_b32 s44, s32, 9
        s_add_u32 s44, s44, %d
        s_mov_b32 exec_hi, 0
        buffer_store_dwordx4 v[12:15], v2, s[40:43], s44 offen sc0 sc1
        s_mul_i32 s44, s32, 768
        s_add_u32 s44, s44, 40960
        s_mov_b32 exec_hi, 0xffff
        buffer_store_dwordx4 v[12:15], v2, s[40:43], s44 offen sc0 sc1
        s_mov_b64 exec, -1
        F_z0:
        """ % (name, name, M.CX_REL))
    def rowloads():
        a("s_cmp_lt_u32 s3, 2")
        a("s_mov_b32 s44, %d" % (AL[("S", 1)][0] * G - 8192))
        a("s_cselect_b32 s44, %d, s44" % (AL[("S", 0)][0] * G))
        if cfg.get("xb", 0) & 64: a("s_mov_b32 s44, %d" % (AL[("X", SS)][0] * G))
        a("s_lshl_b32 s45, s3, 12")
        a("s_add_u32 s44, s44, s45")
        a("v_add_u32 v4, s44, v4")
        a("v_add_u32 v8, %d, v8" % M.WRL)
        for n in range(4): a("ds_read_b128 %s, v4 offset:%d" % (q4(XS + 4 * n), n * 512))
        a("s_mov_b32 exec_lo, 0x00ff00ff")
        a("s_mov_b32 exec_hi, 0x00ff00ff")
        for n in range(4): a("ds_read_b128 %s, v8 offset:%d" % (q4(WS + 4 * n), n * 512))
        a("s_mov_b64 exec, -1")
        a("s_waitcnt lgkmcnt(0)")
    vis = [0]
    MW = {t: cfg.get("me%d" % t, {13: 2, 14: 2, 15: 2}.get(t, 0)) for t in range(6, 16)}
    NSW = cfg.get("nsw", 0); SWN = cfg.get("swn", 6); SW0 = cfg.get("sw0", 7); SWP = cfg.get("swp", 3); SWD = cfg.get("swd", SWP)
    DE = cfg.get("de", 0)
    NGU = (NSW - DE) * SWN + cfg.get('wm', 0)
    WR = [16, 20, 24, 28, 144, 148, 152, 156]
    def dl(j, st):
        a("s_add_u32 s%d, s78, %d" % (st, j * 2048))
        a("buffer_load_dwordx4 %s, v160, s[80:83], s%d offen%s" % (q4(WR[j]), st, NT))
    R2 = cfg.get("r2", 0)
    class Path:
        def __init__(self, nb, visit=False): self.nb = nb; self.visit = visit; self.w = NGU
        def bar(self):
            if cfg.get("diag2") == 5 and self.nb < 16:
                a("s_memrealtime s[92:93]")
            a("s_barrier")
            if cfg.get("diag2") == 5 and self.nb < 16:
                a("s_waitcnt lgkmcnt(0)")
                a("v_writelane_b32 v167, s92, %d" % self.nb)
            for k_ in range(NSW):
                ph = self.nb - SW0 - k_ * SWD
                if 0 <= ph < SWP:
                    lab = a.label("SW")
                    a("s_cmp_lg_u32 s53, %d" % ph)
                    a("s_cbranch_scc1 %s" % lab)
                    a("s_call_b64 s[34:35], F_sw%d" % k_)
                    a("%s:" % lab)
            for _ in range(MW.get(self.nb, 0)):
                j = self.w
                a("s_add_u32 s91, s54, %d" % (((j >> 3) * 32 + (j & 7)) * 7168))
                a("buffer_load_dwordx4 %s, v6, s[16:19], s91 offen%s" % (q4(72 + 4 * j), NT))
                self.w += 1
            self.nb += 1
            if self.visit:
                for _ in range(cfg.get("nlv", 1)):
                    a("; @@VISIT:l:%d@@" % (self.nb * 1000 + vis[0])); vis[0] += 1
        def until(self, n):
            while self.nb < n: self.bar()
    a("; @@PRI:e:0@@")
    Pa = Path(0)
    TG = cfg.get("tg", 10)
    TE = cfg.get("te", 12)
    TM = 16
    def csreads():
        for pc in range(4):
            for ks in range(2):
                for h in range(2):
                    a("ds_read_b64_tr_b16 %s, v%d offset:%d" % (pr(72 + (pc * 2 + ks) * 4 + 2 * h), 62 + pc, ks * 4096 + h * 512))
            if pc == 1: a("s_waitcnt lgkmcnt(4)")
    def colsum1():
        if QF == 0: a("s_cmp_eq_u32 s3, 0")
        else: a("s_bitcmp0_b32 s3, 0")
        a("s_cbranch_scc1 F_cs1")
        csreads()
        a("s_branch F_cs2")
        a("F_cs1:")
        a("v_add_u32 v60, %d, v3" % M.FLG)
        a("s_mov_b32 exec_hi, 0xffff")
        a("ds_write_b32 v60, v12")
        a("s_mov_b64 exec, -1")
        a("F_cs2:")
    def colsumq():
        a("s_cmp_lg_u32 s3, 2")
        a("s_cbranch_scc1 F_cs3")
        csreads()
        a("s_waitcnt lgkmcnt(0)")
        a("F_cs3:")
    def setup2():
        a.srd(24, 72, M.ZB, M.KV_OFF)
        a.srd(48, 70, 256)
        a("s_lshl_b32 s47, s32, 9")
        s_addr(a, 56, 47, M.KEY_OFF + M.CX_REL)
        a("s_lshl_b32 s47, s33, 9")
        s_addr(a, 58, 47, M.KEY_OFF + M.CX_REL + 256)
        for i in range(4): a("v_mov_b32 v%d, 0x3f803f80" % (68 + i))
        a("s_waitcnt lgkmcnt(0)")
    def colsum2():
        for ks in range(2):
            for pc in range(4):
                a(mfma16(104 + 4 * pc, 68, 72 + (pc * 2 + ks) * 4, ks == 0))
        a("""
        v_cmp_eq_u32 vcc, 1, v5
        v_cndmask_b32 v66, v104, v108, vcc
        v_cmp_eq_u32 vcc, 2, v5
        v_cndmask_b32 v66, v66, v112, vcc
        v_cmp_eq_u32 vcc, 3, v5
        v_cndmask_b32 v66, v66, v116, vcc
        """)
    def publish_ready():
        a("""
        s_cmp_lg_u32 s75, 0
        s_cbranch_scc1 F_z4
        s_lshl_b32 s45, s32, 2
        s_add_u32 s44, s70, s45
        s_addc_u32 s45, s71, 0
        s_mov_b32 s46, 1
        s_waitcnt vmcnt(%d)
        s_atomic_add s46, s[44:45], 0
        F_z4:
        """ % 0)
    A0 = 48
    D1, D2, D3 = 120, 124, 128
    def stats0():
        for n in range(4):
            a(mfma16(D1, XS + 4 * n, XS + 4 * n, n == 0))
            a(mfma16(D2, XS + 4 * n, WS + 4 * n, n == 0))
            a(mfma16(D3, WS + 4 * n, WS + 4 * n, n == 0))
    def stats1():
        a("v_and_b32 v52, 3, v0")
        for k in range(1, 4):
            a("v_cmp_eq_u32 vcc, %d, v52" % k)
            for D in (D1, D2, D3): a("v_cndmask_b32 v%d, v%d, v%d, vcc" % (D, D, D + k))
        for pm in ("[1,0,3,2]", "[2,3,0,1]"):
            for D in (D1, D2, D3): a("v_add_f32_dpp v%d, v%d, v%d quad_perm:%s row_mask:0xf bank_mask:0xf" % (D, D, D, pm))
        for dst, D, l0, l1 in ((48, D2, (8, 24), (40, 56)), (49, D1, (0, 20), (40, 60)), (50, D2, (0, 20), (32, 52)), (51, D3, (8, 24), (8, 24))):
            a("v_readlane_b32 s44, v%d, %d" % (D, l0[0]))
            a("v_readlane_b32 s45, v%d, %d" % (D, l0[1]))
            a("v_readlane_b32 s46, v%d, %d" % (D, l1[0]))
            a("v_readlane_b32 s47, v%d, %d" % (D, l1[1]))
            a("v_mov_b32 v%d, s44" % dst)
            a("v_mov_b32 v%d, s45" % (dst + 4))
            a("v_writelane_b32 v%d, s46, 1" % dst)
            a("v_writelane_b32 v%d, s47, 1" % (dst + 4))
    def stats2():
        for k in range(4): a("v_add_f32 v%d, v%d, v%d" % (A0 + k, A0 + k, A0 + 4 + k))
        a("""
        v_mul_f32 v48, 0x3a800000, v48            ; mean
        v_mul_f32 v49, 0x3a800000, v49
        v_fma_f32 v49, -v48, v48, v49             ; var
        v_max_f32 v49, 0, v49
        v_cvt_pk_bf16_f32 v52, v48, v49
        v_lshlrev_b32 v48, 16, v52                ; mean_bf
        v_and_b32 v49, 0xffff0000, v52            ; var_bf
        v_add_f32 v49, 0x%x, v49
        v_cvt_pk_bf16_f32 v49, v49, v49
        v_lshlrev_b32 v49, 16, v49
        v_sqrt_f32 v49, v49
        v_cvt_pk_bf16_f32 v49, v49, v49
        v_lshlrev_b32 v49, 16, v49
        v_rcp_f32 v49, v49                        ; rstd
        v_xor_b32 v48, 0x80000000, v48            ; negmean
        v_fma_f32 v50, v48, v51, v50
        v_mul_f32 v50, v50, v49                   ; r
        v_add_u32 v50, 0x8000, v50                ; top 16 bits: r rounded to bf16, 5 more bits order near ties
        v_ashrrev_i32 v51, 31, v50
        v_or_b32 v51, 0x80000000, v51
        v_xor_b32 v50, v50, v51
        v_and_b32 v50, 0xfffff800, v50
        s_sub_u32 s44, 2047, s77
        v_sub_u32 v51, s44, v9
        v_or_b32 v50, v50, v51
        s_lshl_b32 s44, s3, 1
        v_add_u32 v52, s44, v9                    ; row in record
        v_lshlrev_b32 v53, 3, v52
        v_lshlrev_b32 v52, 2, v52
        v_add_u32 v53, %d, v53
        v_add_u32 v52, %d, v52
        s_mov_b64 exec, 3
        ds_write_b64 v53, v[48:49]
        ds_write_b32 v52, v50
        s_mov_b64 exec, -1
        s_waitcnt lgkmcnt(0)
        """ % (EPS5, RECL, RECL + 64))
        dg.t(1)
    def stores():
        a("""
        s_cmp_eq_u32 s3, 0
        s_cbranch_scc1 F_ax0
        s_mul_i32 s44, s33, 768
        s_add_u32 s44, s44, 40960
        s_add_u32 s45, s3, 1
        s_lshr_b32 s45, s45, 1           ; wave 1 -> seg 1, wave 3 -> seg 2
        s_cmp_eq_u32 s3, 2
        s_cselect_b32 s45, 0, s45
        s_lshl_b32 s45, s45, 8
        s_add_u32 s44, s44, s45
        buffer_atomic_add_f32 v66, v3, s[40:43], s44 offen
        s_mul_i32 s44, s2, %d
        s_mul_i32 s45, s3, %d
        s_add_u32 s44, s44, s45
        s_sub_u32 s44, s44, %d
        s_mov_b64 exec, 0x%x
        buffer_store_dwordx4 v[12:15], v2, s[24:27], s44 offen sc0 sc1
        s_mov_b64 exec, -1
        s_branch F_s1
        F_ax0:
        v_add_u32 v60, %d, v3
        ds_read_b32 v60, v60
        s_lshl_b32 s44, s76, 7
        s_mov_b32 exec_hi, 0
        s_waitcnt lgkmcnt(0)
        buffer_store_dword v60, v3, s[40:43], s44 offen sc0 sc1
        s_mov_b64 exec, -1
        F_s1:
        """ % (M.ZPER, M.ZPER // 3, M.ZPER // 3, (1 << (M.ZPER // 48)) - 1, RECL))
    assert M.ZPER % 384 == 0
    SS = cfg.get("ss", 2)
    ev = {}
    def at(t, f): ev.setdefault(t, []).append(f)
    at(0, colsum1)
    at(0, setup2)
    if QF: at(1, colsumq)
    at(SS, rowloads)
    at(SS, stats0)
    at(cfg.get('tp', 0), publish_ready)
    S1 = SS + cfg.get("s1", 1); S2 = S1 + cfg.get("s2", 1)
    def c2a():
        a("s_bitcmp0_b32 s3, 0")
        a("s_cbranch_scc1 F_c2a")
        colsum2()
        a("F_c2a:")
    def c2b():
        a("s_cmp_lg_u32 s3, 2")
        a("s_cbranch_scc1 F_c2b")
        colsum2()
        a("F_c2b:")
    if QF and cfg.get("c2", 1) == 0:
        at(0, c2a); at(cfg.get("c2q", 2), c2b)
    else: at(cfg.get("c2", 1), colsum2)
    at(S1, stats1)
    at(S2, stats2)
    TS = S2 + 1
    def ready1():
        a("s_cmp_lg_u32 s3, 0")
        a("s_cbranch_scc1 F_r1")
        a("buffer_load_dword v11, v59, s[48:51], 0 offen sc0 sc1")
        a("F_r1:")
    def ready2():
        a("s_cmp_lg_u32 s3, 0")
        a("s_cbranch_scc1 F_a0r")
        a("F_a0p:")
        spin_guard(a)
        a("s_waitcnt vmcnt(0)")
        a("v_cmp_eq_u32 vcc, 0, v11")
        a("s_cbranch_vccz F_a0r")
        a("s_sleep 4")
        a("buffer_load_dword v11, v59, s[48:51], 0 offen sc0 sc1")
        a("s_branch F_a0p")
        a("F_a0r:")
    TS = max(TS, cfg.get("ts", 4))
    at(TS - 2, ready1)
    at(TS - 1, ready2)
    at(TS, stores)
    TAR = TS + cfg.get("aw", 1)
    MSW = ""
    if cfg.get("msw"):
        MSW = """s_and_b32 s44, s89, 0xe2
        s_bfe_u32 s45, s89, 0x10002
        s_lshl_b32 s45, s45, 4
        s_or_b32 s44, s44, s45
        s_and_b32 s45, s89, 1
        s_lshl_b32 s45, s45, 3
        s_or_b32 s44, s44, s45
        s_bfe_u32 s45, s89, 0x10004
        s_lshl_b32 s45, s45, 2
        s_or_b32 s44, s44, s45
        s_bfe_u32 s45, s89, 0x10003
        s_or_b32 s44, s44, s45
        s_xor_b32 s89, s44, %d""" % ((cfg["msw"] - 1) << 3)
    a("""
    s_and_b32 s89, s2, 0xdd
    s_bfe_u32 s44, s2, 0x10005
    s_lshl_b32 s44, s44, 1
    s_or_b32 s89, s89, s44
    s_bfe_u32 s44, s2, 0x10001
    s_xor_b32 s44, s44, 1
    s_lshl_b32 s44, s44, 5
    s_or_b32 s89, s89, s44           ; MoE id (>= 224 for the workgroups with slow k,v columns)
    s_xor_b32 s89, s89, CXOR
    MSWAP
    s_and_b32 s36, s89, 3            ; p
    s_bfe_u32 s37, s89, 0x10002      ; mat
    s_lshr_b32 s38, s89, 3           ; cs (valid < 28) ; also ti
    s_cmp_eq_u32 s37, 0
    s_cselect_b32 s16, s62, s64
    s_cselect_b32 s17, s63, s65
    s_cmp_lt_u32 s89, 224
    s_cselect_b32 s18, %d, 0
    v_mul_u32_u24 v6, %d, v5
    v_lshl_add_u32 v6, v7, 4, v6     ; weight voffset
    s_lshl_b32 s44, s36, 2
    s_add_u32 s44, s44, s3
    s_mul_i32 s54, s44, %d           ; (p*256 + 64x) rows
    s_lshl_b32 s45, s38, 8
    s_add_u32 s54, s54, s45
    s_lshl_b32 s55, s44, 7           ; k byte offset
    """.replace("MSWAP", MSW).replace("CXOR", str(cfg.get("cx", 0) << 3)) % (0 if cfg.get("nomoe", 0) & 1 else 1024 * 7168, 8 * 7168, 64 * 7168))
    a("""
    s_add_u32 s39, s35, DROT
    s_and_b32 s39, s39, 7            ; tj = (ri + r) & 7
    s_lshl_b32 s10, s34, 3
    s_add_u32 s10, s10, s30          ; ti = cj*8 + xcd
    DOLD
    s_mul_i32 s10, s10, 112
    s_mul_i32 s79, s3, 28
    s_add_u32 s10, s10, s79          ; f0
    s_lshl_b32 s78, s10, 11
    s_lshl_b32 s79, s39, 8
    s_add_u32 s78, s78, s79
    v_mul_u32_u24 v160, 14336, v5
    v_lshl_add_u32 v160, v7, 4, v160
    """.replace("DROT", str(cfg.get("drot", 2))).replace("DOLD", "s_and_b32 s39, s89, 7\ns_mov_b32 s10, s38" if cfg.get("drot", 2) < 0 else ""))
    a.srd(80, 66, 0 if cfg.get("nomoe", 0) & 2 else 3584 * 2048)
    WM = cfg.get("wm", 0)
    def wmerge():
        if cfg.get("wms"): a("s_sleep %d" % cfg["wms"])
        for j in range(WM):
            a("s_add_u32 s91, s54, %d" % (((j >> 3) * 32 + (j & 7)) * 7168))
            a("buffer_load_dwordx4 %s, v6, s[16:19], s91 offen%s" % (q4(72 + 4 * j), NT))
    at(TS, wmerge)
    RK = cfg.get("rk2", 0)
    def ticket():
        a("s_cmp_lg_u32 s3, 1")
        a("s_cbranch_scc1 F_tk0")
        a("s_mov_b32 s6, 31")
        a("s_cmp_eq_u32 s2, %d" % cfg.get("selwg", 6))
        a("s_cbranch_scc1 F_tk0")
        a("s_lshl_b32 s47, s35, 9")
        s_addr(a, 84, 47, M.KEY_OFF + M.CX_REL + 448)
        a("s_mov_b32 s6, 1")
        a("s_atomic_add s6, s[84:85], 0 glc")
        a("F_tk0:")
    if RK: at(TAR if RK == 2 else TS, ticket)
    for f in ev.get(-1, []): f()
    for t in range(TAR + 1):
        Pa.bar()
        if AB & 8 and t == TS:
            Pa.until(17)
            a("s_endpgm")
            Pa.nb = t + 1
        for f in ev.get(t, []): f()
        if cfg.get("ev0", 1) <= t < cfg.get("ev0", 1) + 2:
            lab = a.label("EV")
            for w in range(4):
                lab = a.label("EV")
                a("s_cmp_lg_u32 s3, %d" % w)
                a("s_cbranch_scc1 %s" % lab)
                a("; @@VISIT:e:%d@@" % (4 * t + w))
                a("%s:" % lab)
    a("v_mov_b32 v4, %d" % (M.F_Y + 8))
    a("v_mov_b32 v8, 1")
    a("s_lshr_b32 s47, s32, 2")
    a("s_lshl_b32 s47, s47, 11")
    s_addr(a, 86, 47, M.KEY_OFF + M.CX_REL + 384)
    a("s_waitcnt vmcnt(%d)" % WM)
    a("""
    s_mov_b64 exec, 1
    ds_add_rtn_u32 v9, v4, v8
    s_waitcnt lgkmcnt(0)
    v_readfirstlane_b32 s44, v9
    s_mov_b64 exec, -1
    s_cmp_lg_u32 s44, 3
    s_cbranch_scc1 F_a0s
    s_mov_b32 s74, 1
    s_atomic_add s74, s[86:87], 0
    s_atomic_add s74, s[56:57], 0
    s_atomic_add s74, s[58:59], 0
    F_a0s:
    """)
    if RK:
        if RK == 2: Pa.bar()
        a("s_cmp_lg_u32 s3, 1")
        a("s_cbranch_scc1 F_tk1")
        a("s_waitcnt lgkmcnt(0)")
        a("v_mov_b32 v4, s6")
        a("s_mov_b64 exec, 1")
        a("ds_write_b32 v10, v4 offset:%d" % (M.F_MW - M.FLG))
        a("s_mov_b64 exec, -1")
        a("s_waitcnt lgkmcnt(0)")
        a("F_tk1:")
    Pa.bar()
    if RK:
        a("""
        v_mov_b32 v4, %d
        ds_read_b32 v4, v4
        s_waitcnt lgkmcnt(0)
        v_readfirstlane_b32 s44, v4
        s_sub_u32 s45, s44, 7
        s_mul_i32 s46, s45, 43
        s_lshr_b32 s46, s46, 7           ; k/3
        s_mul_i32 s47, s46, 3
        s_sub_u32 s47, s45, s47          ; k%%3
        s_min_u32 s38, s47, 1
        s_add_u32 s47, s47, s38
        s_lshl_b32 s46, s46, 2
        s_add_u32 s46, s46, s47
        s_lshl_b32 s38, s44, 2
        s_add_u32 s38, s38, 1
        s_cmp_lt_u32 s44, 7
        s_cselect_b32 s38, s38, s46
        s_lshl_b32 s89, s44, 3           ; >= 224 <=> no slice
        s_and_b32 s36, s35, 3            ; p
        s_lshr_b32 s37, s35, 2           ; mat
        s_cmp_eq_u32 s37, 0
        s_cselect_b32 s16, s62, s64
        s_cselect_b32 s17, s63, s65
        s_cmp_lt_u32 s89, 224
        s_cselect_b32 s18, %d, 0
        s_lshl_b32 s44, s36, 2
        s_add_u32 s44, s44, s3
        s_mul_i32 s54, s44, %d
        s_lshl_b32 s45, s38, 8
        s_add_u32 s54, s54, s45
        s_lshl_b32 s55, s44, 7
        """ % (M.F_MW + 4, 1024 * 7168, 64 * 7168))
    nb1 = Pa.nb
    assert all(MW[t] == 0 for t in MW if t < nb1)
    if NSW:
        assert SW0 >= nb1 and SW0 + (NSW - 1) * SWD + SWP - 1 <= TE
        a("s_mul_i32 s53, s2, %d" % cfg.get("swh", 37))
        a("s_and_b32 s53, s53, 255")
        a("s_mul_i32 s53, s53, %d" % SWP)
        a("s_lshr_b32 s53, s53, 8")
        if cfg.get("swc") is not None:
            a("s_lshr_b32 s53, s11, 1")
            a("s_add_u32 s53, s53, %d" % cfg["swc"])
            a("s_and_b32 s53, s53, 3")
        a("s_branch F_swx")
        for k_ in range(NSW):
            a("F_sw%d:" % k_)
            if cfg.get("sws"): a("s_sleep %d" % cfg["sws"])
            if DE and k_ == 0:
                for j in range(7): dl(j, 91)
            for j in range(WM + (k_ - DE) * SWN, WM + (k_ - DE + 1) * SWN) if k_ >= DE else []:
                a("s_add_u32 s91, s54, %d" % (((j >> 3) * 32 + (j & 7)) * 7168))
                a("buffer_load_dwordx4 %s, v6, s[16:19], s91 offen%s" % (q4(72 + 4 * j), NT))
            a("s_setpc_b64 s[34:35]")
        a("F_swx:")
    if AB & 16:
        Pa.until(17)
        a("s_endpgm")
    def check(Px, tg, sbs, tgt):
        assert Px.nb <= tg + 1
        Px.until(tg + 1)
        for k_, sb in enumerate(sbs): a("s_load_dword s%d, s[%d:%d], 0 glc" % (76 + k_, sb, sb + 1))
        Px.bar()
        a("s_waitcnt lgkmcnt(0)")
        for k_, sb in enumerate(sbs):
            lab = a.label("GC")
            a("s_cmp_ge_u32 s%d, %d" % (76 + k_, tgt))
            a("s_cbranch_scc1 %s" % lab)
            s_poll(a, sb, tgt, 76 + k_, sleep=3)
            a("%s:" % lab)
    a("s_cmp_eq_u32 s3, 2")
    a("s_cbranch_scc1 F_ax2")
    a("s_cmp_eq_u32 s3, 1")
    a("s_cbranch_scc1 F_ax1")
    a("s_cmp_eq_u32 s3, 0")
    a("s_cbranch_scc1 F_ax0b")
    Pv = Path(nb1, visit=True)
    if cfg.get("tlb"):
        Pv.until(cfg["tlb"] + 1)
        a("""
        s_lshl_b32 s44, s32, 18
        s_add_u32 s44, s44, %d
        s_add_u32 s44, s72, s44
        s_addc_u32 s45, s73, 0
        s_load_dword s76, s[44:45], 0
        s_lshl_b32 s46, s28, 18
        s_add_u32 s44, s68, s46
        s_addc_u32 s45, s69, 0
        s_load_dword s76, s[44:45], 0
        s_load_dword s76, s[8:9], 0
        s_load_dword s76, s[8:9], 0xffff0
        s_add_u32 s44, s80, s78
        s_addc_u32 s45, s81, 0
        s_load_dword s76, s[44:45], 0
        s_add_u32 s44, s72, %d
        s_addc_u32 s45, s73, 0
        s_load_dword s76, s[44:45], 0
        """ % (M.O_OFF, M.PRE_OFF + M.PRE_BYTES))
        Pv.bar(); Pv.bar()
        a("s_waitcnt lgkmcnt(0)")
    if cfg.get("tw", 0) == 1:
        Pv.until(cfg.get("twt", TE) + 1)
        a.srd(84, 8, 1024 * 2048)
        a("""
        v_lshrrev_b32 v32, 3, v0
        v_and_b32 v33, 7, v0
        v_lshlrev_b32 v33, 7, v33
        v_lshl_add_u32 v32, v32, 11, v33
        s_lshl_b32 s47, s31, 16
        s_lshr_b32 s44, s30, 2
        s_lshl_b32 s44, s44, 10
        s_add_u32 s47, s47, s44
        """)
        if cfg.get("tes", 4): a("s_sleep %d" % cfg.get("tes", 4))
        for i in range(4):
            a("buffer_load_dword v%d, v32, s[84:87], s47 offen" % (60 + i))
            a("s_add_u32 s47, s47, 16384")
    Pv.until(14)
    Pv.visit = False
    a("s_load_dword s76, s[56:57], 0 glc")
    Pv.bar()
    a("s_waitcnt lgkmcnt(0)")
    a("s_cmp_lt_u32 s76, %d" % M.GO)
    a("s_cbranch_scc1 F_g3")
    fset(10, 4, 1, off=M.F_SC - M.FLG)
    a("s_mov_b32 s88, 0")
    a("F_g3:")
    Pv.until(TM)
    a("s_branch F_aj")
    a("; @@PRI:e:3@@")
    a("F_ax1:")
    P1 = Path(nb1, visit=True)
    P1.until(TG)
    P1.visit = False
    a("s_mul_i32 s44, s33, 768")
    a("s_add_u32 s44, s44, 40960")
    check(P1, TG, [58], 16)
    P1.until(TE + 1)
    if cfg.get("tes", 4): a("s_sleep %d" % cfg.get("tes", 4))
    a("s_mov_b32 m0, %d" % M.CL)
    a("s_mov_b32 exec_hi, 0xffff")
    a("buffer_load_dwordx4 v2, s[40:43], s44 offen sc0 sc1 lds")
    a("s_mov_b64 exec, -1")
    w0 = P1.w
    for _ in range(cfg.get("gw", 2)): P1.bar()
    a("s_waitcnt vmcnt(%d)" % (P1.w - w0))
    fset(10, 4, 1, off=M.F_SC - M.FLG)
    assert P1.nb <= TM
    if R2:
        assert P1.nb == TM - 1
        a("s_lshl_b32 s47, s39, 9")
        s_addr(a, 58, 47, M.KEY_OFF + M.CX_REL + 448)
        a("s_mov_b32 s76, 1")
        a("s_atomic_add s76, s[58:59], 0 glc")
    P1.until(TM)
    a("s_branch F_aj")
    a("; @@STUB@@")
    a("F_ax0b:")
    P0 = Path(nb1, visit=True)
    P0.until(TG)
    P0.visit = False
    a("s_lshl_b32 s47, s28, 9")
    a("s_waitcnt lgkmcnt(0)")
    s_addr(a, 58, 47, M.KEY_OFF + M.CX_REL)
    a("""
    s_lshl_b32 s44, s32, 11
    s_lshl_b32 s45, s28, 11
    v_lshrrev_b32 v11, 2, v0
    v_and_b32 v9, 3, v0
    v_lshlrev_b32 v9, 4, v9
    v_lshl_add_u32 v11, v11, 7, v9
    """)
    check(P0, TG, [56, 58], 16)
    P0.until(TE + 1)
    if cfg.get("tes", 4): a("s_sleep %d" % cfg.get("tes", 4))
    a("""
    buffer_load_dwordx4 v[32:35], v11, s[40:43], s44 offen sc0 sc1
    buffer_load_dwordx4 v[36:39], v11, s[40:43], s45 offen sc0 sc1
    v_lshlrev_b32 v9, 3, v0
    v_add_u32 v9, %d, v9
    s_mov_b32 s44, 0x%x
    """ % (M.NML, LOG2E))
    w0 = P0.w
    for _ in range(cfg.get("gw", 2)): P0.bar()
    a("s_waitcnt vmcnt(%d)" % (P0.w - w0))
    a("""
    v_swap_b32 v33, v34
    v_swap_b32 v37, v38
    v_mul_f32 v40, s44, v34
    v_mul_f32 v41, s44, v35
    ds_write_b64 v9, v[32:33]
    ds_write_b64 v9, v[40:41] offset:1024
    ds_write_b64 v9, v[36:37] offset:1536
    ds_write_b64 v9, v[38:39] offset:2048
    """)
    fset(10, 4, 1, off=M.F_SC - M.FLG)
    assert P0.nb <= TM
    P0.until(TM)
    a("s_branch F_aj")
    a("; @@PRI:-:0@@")
    a("F_ax2:")
    a("s_cmp_lg_u32 s2, %d" % cfg.get("selwg", 6))
    a("s_cbranch_scc1 F_a2n")
    def BAR():
        lab = a.label("DB")
        a("s_cmp_ge_u32 s74, 17")
        a("s_cbranch_scc1 %s" % lab)
        a("s_barrier")
        a("s_add_u32 s74, s74, 1")
        a("%s:" % lab)
    a("s_waitcnt lgkmcnt(0)")
    a("s_mov_b32 s74, %d" % nb1)
    a("""
    v_lshrrev_b32 v11, 1, v0
    v_and_b32 v9, 1, v0
    v_lshlrev_b32 v9, 4, v9
    v_lshl_add_u32 v11, v11, 7, v9   ; keys voffset
    v_lshlrev_b32 v9, 9, v0
    v_mov_b32 v8, %d
    F_a2l:
    """ % M.GO)
    spin_guard(a)
    for k in range(4): a("s_load_dword s%d, s[40:41], 0x%x glc" % (60 + k, M.CX_REL + 384 + k * 2048))
    a("""
    s_waitcnt lgkmcnt(0)
    s_add_u32 s60, s60, s61
    s_add_u32 s62, s62, s63
    s_add_u32 s60, s60, s62
    s_cmp_ge_u32 s60, 256
    s_cbranch_scc1 F_a2t
    """)
    BAR()
    a("s_branch F_a2l")
    a("F_a2t:")
    dg.t(6)
    KEYS = 16
    for i in range(8):
        a("s_movk_i32 s44, %d" % (i * 4096))
        a("buffer_load_dwordx4 %s, v11, s[40:43], s44 offen offset:64 sc0 sc1" % q4(KEYS + 4 * i))
    a("""
    s_mov_b32 s44, %d
    s_mov_b64 exec, 0xffff
    buffer_atomic_add v8, v9, s[40:43], s44 offen
    s_mov_b64 exec, -1
    """ % M.CX_REL)
    d6 = env["dc"] if cfg.get("diag2") == 6 else Diag(a, 0, 0)
    d6.t(0)
    BAR()
    d6.t(1)
    a("s_waitcnt vmcnt(1)")
    d6.t(2)
    a("v_max3_u32 v48, v%d, v%d, v%d" % (KEYS, KEYS + 1, KEYS + 2))
    a("v_med3_u32 v49, v%d, v%d, v%d" % (KEYS, KEYS + 1, KEYS + 2))
    a("v_min3_u32 v50, v%d, v%d, v%d" % (KEYS, KEYS + 1, KEYS + 2))
    for i in range(3, 32):
        a("v_med3_u32 v50, v49, v50, v%d" % (KEYS + i))
        a("v_med3_u32 v49, v48, v49, v%d" % (KEYS + i))
        a("v_max_u32 v48, v48, v%d" % (KEYS + i))
    d6.t(3)
    if cfg.get("sb3", 1): BAR()
    d6.t(4)
    a("s_mov_b32 s53, 0")
    for rnd in range(8):
        if rnd:
            a("v_subrev_u32 v48, s52, v48")
            a("v_subrev_u32 v49, s52, v49")
        a("v_max_u32 v4, v48, v49")
        wave_reduce(a, "v_max_u32", 4, 52)
        a("s_add_u32 s53, s53, s52")
        a("v_writelane_b32 v13, s53, %d" % rnd)
        if rnd == cfg.get('rb', 9): BAR()
    a("v_cmp_lt_u32 vcc, s53, v50")
    a("s_cbranch_vccz F_a2k")
    a("s_mov_b32 s53, 0")
    a("s_mov_b32 s52, 0")
    a("s_mov_b32 s64, 0")
    a("F_a2f:")
    for i in range(32): a("v_subrev_u32 v%d, s52, v%d" % (KEYS + i, KEYS + i))
    a("v_max3_u32 v4, v%d, v%d, v%d" % (KEYS, KEYS + 1, KEYS + 2))
    a("v_max3_u32 v12, v%d, v%d, v%d" % (KEYS + 3, KEYS + 4, KEYS + 5))
    i = 6; tog = 0
    while i < 32:
        r_ = (4, 12)[tog]
        a("v_max3_u32 v%d, v%d, v%d, v%d" % (r_, r_, KEYS + i, KEYS + i + 1))
        i += 2; tog ^= 1
    a("v_max_u32 v4, v4, v12")
    wave_reduce(a, "v_max_u32", 4, 52)
    a("s_add_u32 s53, s53, s52")
    a("s_mov_b32 m0, s64")
    a("v_writelane_b32 v13, s53, m0")
    BAR()
    a("s_add_u32 s64, s64, 1")
    a("s_cmp_lt_u32 s64, 8")
    a("s_cbranch_scc1 F_a2f")
    a("F_a2k:")
    a("""
    v_and_b32 v4, 7, v0
    v_lshlrev_b32 v4, 2, v4
    ds_bpermute_b32 v12, v4, v13
    v_lshrrev_b32 v9, 3, v0
    v_lshl_add_u32 v4, v9, 9, v4
    s_mov_b32 s44, %d
    s_mov_b32 s45, %d
    s_waitcnt lgkmcnt(0)
    v_and_b32 v12, 0xffff07ff, v12
    v_or_b32 v12, 0x8000, v12
    buffer_store_dword v12, v4, s[40:43], s44 offen sc0 sc1
    buffer_store_dword v12, v4, s[40:43], s45 offen sc0 sc1
    """ % (M.CX_REL + 128, M.CX_REL + 128 + 4096))
    dg.t(8)
    d6.t(5)
    if d6.on:
        a("s_mov_b32 s60, s2")
        for k_ in range(6):
            a("s_mov_b32 s2, %d" % k_)
            d6.out(3)
            a("s_mov_b64 exec, -1")
            a("v_add_u32 v167, 1, v167")
        a("s_mov_b32 s2, s60")
    a("F_a2m:")
    BAR()
    a("s_cmp_lt_u32 s74, 17")
    a("s_cbranch_scc1 F_a2m")
    for j in range(7 if DE else 0): dl(j, 91)
    for j in range(WM, NGU + sum(MW.values())):
        a("s_add_u32 s91, s54, %d" % (((j >> 3) * 32 + (j & 7)) * 7168))
        a("buffer_load_dwordx4 %s, v6, s[16:19], s91 offen%s" % (q4(72 + 4 * j), NT))
    a("s_branch F_aj2")
    a("; @@PRI:e:4@@")
    a("; @@STUB@@")
    a("; @@PRI:l:3:DENS@@")
    a("F_a2n:")
    def selwrite(b):
        for t in range(8):
            a("s_andn2_b32 s%d, s%d, 0x8000" % (b + t, b + t))
            a("v_writelane_b32 v12, s%d, %d" % (b + t, t))
        a("v_add_u32 v4, %d, v3" % M.SELL)
        a("s_mov_b64 exec, 0xff")
        a("ds_write_b32 v4, v12")
        a("s_mov_b64 exec, -1")
        fset(10, 4, 1, off=M.F_SC - M.FLG)
    def seltest(b):
        a("s_waitcnt lgkmcnt(0)")
        a("s_and_b64 s[44:45], s[%d:%d], s[%d:%d]" % (b, b + 1, b + 2, b + 3))
        a("s_and_b64 s[44:45], s[44:45], s[%d:%d]" % (b + 4, b + 5))
        a("s_and_b64 s[44:45], s[44:45], s[%d:%d]" % (b + 6, b + 7))
        a("s_and_b32 s44, s44, s45")
        a("s_bitcmp1_b32 s44, 15")
    P2 = Path(nb1, visit=True)
    P2.until(TM - 2)
    P2.visit = False
    a("s_load_dwordx8 s[60:67], s[56:57], 128 glc")
    P2.bar()
    seltest(60)
    a("s_cbranch_scc0 F_a2q")
    selwrite(60)
    a("s_waitcnt lgkmcnt(0)")
    a("s_mov_b32 s88, 1")
    if cfg.get("st2", 1):
        a("s_branch F_a2r")
        a("F_a2q:")
        a("s_load_dwordx8 s[60:67], s[56:57], 128 glc")
        a("F_a2r:")
        P2.bar()
        a("s_cmp_lg_u32 s88, 2")
        a("s_cbranch_scc1 F_aj")
        seltest(60)
        a("s_cbranch_scc0 F_a2s")
        selwrite(60)
        a("s_mov_b32 s88, 1")
        a("F_a2s:")
        fset(10, 4, 1, off=M.F_MW - M.FLG)
    else:
        a("F_a2q:")
        P2.bar()
    a("F_aj:")
    a("s_mov_b32 s74, 0")
    a("F_aj2:")
    a("""
    v_and_b32 v13, 3, v0
    v_lshlrev_b32 v13, 2, v13
    v_add_u32 v13, %d, v13           ; 4 flag words base
    """ % M.FLG)
    def mso(w): return MS[w >> 1] - MS[0] + (w & 1) * 4096
    a("s_cmp_lt_u32 s3, 2")
    a("s_mov_b32 s75, %d" % MS[1])
    a("s_cselect_b32 s75, %d, s75" % MS[0])
    a("s_and_b32 s44, s3, 1")
    a("s_lshl_b32 s44, s44, 12")
    a("s_add_u32 s75, s75, s44")
    a.srd(12, 72, M.PRE_BYTES, M.PRE_OFF)
    WB = 72
    a("s_mov_b32 s47, s10")
    wn = [NGU + sum(MW.values())]
    assert wn[0] <= 16
    def wl(n):
        for _ in range(n):
            j = wn[0]
            if j < 16:
                a("s_add_u32 s45, s54, %d" % (((j >> 3) * 32 + (j & 7)) * 7168))
                a("buffer_load_dwordx4 %s, v6, s[16:19], s45 offen%s" % (q4(WB + 4 * j), NT))
            elif j < 23:
                a("s_add_u32 s45, s78, %d" % ((j - 16) * 2048))
                a("buffer_load_dwordx4 %s, v160, s[80:83], s45 offen%s" % (q4(WR[j - 16]), NT))
            else: return
            wn[0] += 1
    def xloads():
        a("""
        v_and_b32 v4, 7, v0
        v_lshlrev_b32 v4, 2, v4
        v_add_u32 v4, %d, v4
        ds_read_b32 v4, v4
        s_waitcnt lgkmcnt(0)
        v_and_b32 v4, 0x7ff, v4
        v_sub_u32 v4, 2047, v4
        v_and_b32 v11, 7, v4
        v_lshrrev_b32 v9, 3, v4
        v_lshlrev_b32 v9, 7, v9
        v_lshl_add_u32 v9, v11, 3, v9
        v_lshlrev_b32 v4, 11, v4
        v_lshl_add_u32 v4, v5, 4, v4
        buffer_load_dwordx4 v[64:67], v4, s[20:23], s55 offen
        buffer_load_dwordx4 v[68:71], v4, s[20:23], s55 offen offset:64
        buffer_load_dwordx2 v[14:15], v9, s[40:43], 0 offen sc0 sc1
        """ % M.SELL)
    XEARLY = cfg.get("xp", 11) <= wn[0]
    if XEARLY and not cfg.get("xt", 1): a("s_mov_b32 s79, 0")
    if XEARLY and cfg.get("xt", 1):
        a("v_mov_b32 v4, %d" % (M.F_SC + 8))
        a("ds_read_b32 v9, v4")
        a("s_waitcnt lgkmcnt(0)")
        a("v_readfirstlane_b32 s79, v9")
        if cfg.get("st2", 1):
            a("s_cmp_lg_u32 s79, 0")
            a("s_cbranch_scc1 F_xf")
            a("s_cmp_eq_u32 s2, %d" % cfg.get("selwg", 6))
            a("s_cbranch_scc1 F_xe")
            flag_wait(a, 9, 4, 1, off=M.F_MW - M.F_SC)
            a("ds_read_b32 v9, v4")
            a("s_waitcnt lgkmcnt(0)")
            a("v_readfirstlane_b32 s79, v9")
        a("s_cmp_eq_u32 s79, 0")
        a("s_cbranch_scc1 F_xe")
        a("F_xf:")
        xloads()
        a("F_xe:")
    for t in range(TM, 17):
        lab = a.label("JB")
        a("s_cmp_lg_u32 s74, 0")
        a("s_cbranch_scc1 %s" % lab)
        a("s_barrier")
        a("%s:" % lab)
    if R2:
        a("s_cmp_lg_u32 s3, 1")
        a("s_cbranch_scc1 F_tk")
        a("s_waitcnt lgkmcnt(0)")
        a("s_add_u32 s76, s76, 1")
        a("v_mov_b32 v4, s76")
        a("s_mov_b64 exec, 1")
        a("ds_write_b32 v10, v4 offset:%d" % (M.F_MW - M.FLG))
        a("s_mov_b64 exec, -1")
        a("F_tk:")
    a("s_cmp_lg_u32 s88, 3")
    a("s_cbranch_scc1 F_g4")
    s_poll(a, 56, M.GO, 76, sleep=3)
    fset(10, 4, 1, off=M.F_SC - M.FLG)
    a("F_g4:")
    dg.t(2)
    if cfg.get("p1only"):
        if cfg.get("diag2") == 5:
            a("s_cmp_lg_u32 s3, %d" % cfg.get("dw", 0))
            a("s_cbranch_scc1 F_end")
            env["dc"].out(2)
        a("s_endpgm")
    a("s_setprio %d" % cfg.get("aprio", 1))
    def mgate2(c):
        if c >= 300: flag_wait(a, 12, 13, c - 300, sleep=1, off=M.F_OA - M.FLG)
        else:
            a("v_and_b32 v8, 0xfffffff7, v13")
            flag_wait(a, 12, 8, c - 200, sleep=1, off=M.F_KV - M.FLG)
    def mgate3(c): flag_wait(a, 12, 13, c - 100, sleep=1, off=M.F_KX - M.FLG)
    def mgate(c):
        if c >= 300: flag_wait(a, 9, 13, c - 300, sleep=2, off=M.F_OA - M.FLG)
        elif c >= 200: mgate2(c)
        elif c >= 100: flag_wait(a, 9, 13, c - 100, sleep=2, off=M.F_KX - M.FLG)
        elif c: flag_wait(a, 9, 13, c, sleep=2)
    def xsel():
        dg.t(9)
        if XEARLY:
            a("s_cmp_lg_u32 s79, 0")
            a("s_cbranch_scc1 F_xd")
        a("s_cmp_lg_u32 s88, 2")
        a("s_cbranch_scc1 F_se")
        a("F_sc:")
        spin_guard(a)
        a("s_load_dwordx8 s[60:67], s[56:57], 128 glc")
        seltest(60)
        a("s_cbranch_scc1 F_sd")
        a("s_sleep 4")
        a("s_branch F_sc")
        a("F_sd:")
        selwrite(60)
        a("F_se:")
        a("v_mov_b32 v4, %d" % (M.F_SC + 8))
        flag_wait(a, 9, 4, 1, sleep=1)
        dg.t(10)
        xloads()
        a("F_xd:")
    CAP = cfg.get("cap", 7); CAP2 = cfg.get("cap2", CAP); CJ = cfg.get("capj", 99)
    XP = cfg.get("xp", 11); ND = cfg.get("nd", 16)
    def light():
        lab = a.label("TL")
        a("ds_read_b32 v9, v13 offset:%d" % (M.F_KV - M.FLG))
        a("s_waitcnt lgkmcnt(0)")
        a("v_cmp_ne_u32 vcc, 0, v9")
        a("s_cbranch_vccz %s" % lab)
        flag_wait(a, 9, 13, cfg.get("lgt", 1), sleep=2, off=M.F_OA - M.FLG)
        a("%s:" % lab)
    wx = None
    log = ["w"] * wn[0]
    def stream(upto):
        nonlocal wx
        while wn[0] < upto:
            j = wn[0]
            if wx is None and j >= XP:
                xsel(); wx = j; log.extend(["x"] * 3)
            if cfg.get("mg%d" % j): mgate(cfg["mg%d" % j])
            cap = CAP if j < CJ else CAP2
            n_ = 0; w_ = 0
            for tg in reversed(log):
                if tg == "w":
                    if w_ == cap - 1: break
                    w_ += 1
                n_ += 1
            if n_ < len(log): a("s_waitcnt vmcnt(%d)" % n_)
            if j >= cfg.get("lj", 99): light()
            wl(1); log.append("w")
            if wn[0] == cfg.get("mwf", 16): fset(10, 4, 1, off=M.F_MW - M.FLG)
    if XEARLY:
        xsel(); wx = wn[0]; log.extend(["x"] * 3)
    stream(ND)
    DX = 0
    if cfg.get("ds") == 4:
        for j in range(7): dl(j, 45)
        DX = 7
    a("s_mov_b32 s52, 0x05040100")
    a("s_mov_b32 s53, 0x07060302")
    if R2:
        a("v_mov_b32 v4, %d" % (M.F_MW + 4))
        flag_wait(a, 9, 4, 1, sleep=1)
        a("v_readfirstlane_b32 s33, v9")
        a("s_cmp_gt_u32 s33, %d" % (32 - R2))
        a("s_cselect_b32 s82, 0, s82")
    if cfg.get("nochain"): a("s_endpgm")
    a("s_setprio %d" % cfg.get("aprio2", 2))
    a("s_cmp_ge_u32 s89, 224")
    a("s_cbranch_scc1 F_adown")
    assert wn[0] == 16 and wx == 16 and DX == 0 and not DE
    AC = 32; PB = 136
    DS = cfg.get("ds", 0)
    SINGLE = P["ms_at"] == 0
    KXB = env["KX"]
    F1 = [16, 20, 24, 28, 144, 148, 152, 156]; F2 = [72 + 4 * j for j in range(8)]
    for s_, FR in enumerate((F1, F2)):
        a("s_waitcnt vmcnt(%d)" % (11 if s_ == 0 else 3))
        b = WB + 32 * s_
        for jj in range(8):
            for pp in range(4):
                a("v_perm_b32 v%d, v%d, v%d, s%d" % (FR[jj] + pp, b + 4 * (2 * pp + 1) + (jj >> 1), b + 4 * (2 * pp) + (jj >> 1), 52 + (jj & 1)))
        if s_ == 0:
            a("""
            s_and_b32 s44, s3, 1
            s_lshl_b32 s44, s44, 12
            s_add_u32 s44, s44, %d
            SREG
            v_and_b32 v8, 1, v5              ; q'
            v_lshrrev_b32 v9, 1, v5          ; jj>>2
            v_lshl_add_u32 v4, v9, 3, v8     ; 2*(4*hi) + q'
            v_lshlrev_b32 v9, 8, v4          ; hi*2048 + q'*256
            v_xor_b32 v4, v7, v4
            v_lshl_add_u32 v4, v4, 4, v9
            v_add_u32 v136, s44, v4
            v_xor_b32 v137, 32, v136
            v_xor_b32 v138, 64, v136
            v_xor_b32 v139, 96, v136
            v_add_u32 v8, 8, v10
            s_lshl_b32 s44, s3, 2
            v_add_u32 v140, s44, v5          ; c = 4x + (l>>4)
            v_xor_b32 v140, v140, v7         ; ^ (2jj + q)
            v_lshlrev_b32 v140, 4, v140
            v_lshl_add_u32 v140, v7, 8, v140
            v_add_u32 v140, %d, v140
            s_lshl_b32 s44, s3, 10
            s_lshl_b32 s77, s36, 1
            s_add_u32 s77, s77, s37
            s_mul_i32 s77, s77, %d
            s_lshl_b32 s46, s38, 12
            s_add_u32 s77, s77, s46
            s_add_u32 s77, s77, s44          ; own pre piece offset
            s_lshl_b32 s46, s38, 9
            v_mov_b32 v9, %d
            v_mov_b32 v11, 1
            v_and_b32 v141, 0xfffffff7, v13
            """.replace("SREG", "s_mov_b32 s44, s75" if SINGLE else "") % (KXB, MS[0] if SINGLE else KXB, 3584 * 32, M.F_Y + 12))
            s_addr(a, 56, 46, M.KV_OFF + C_PRE)
    a("s_waitcnt vmcnt(0)")
    dg.t(11)
    a("s_setprio %d" % cfg.get("aprio2a", 1))
    for i in range(8):
        a("v_lshlrev_b32 v%d, 16, v%d" % (34 + 2 * i, 64 + i))
        a("v_and_b32 v%d, 0xffff0000, v%d" % (35 + 2 * i, 64 + i))
    for i in range(16): a("v_add_f32 v%d, v%d, v14" % (34 + i, 34 + i))
    for i in range(8): a("v_cvt_pk_bf16_f32 v%d, v%d, v%d" % (64 + i, 34 + 2 * i, 35 + 2 * i))
    for i in range(8):
        a("v_lshlrev_b32 v%d, 16, v%d" % (34 + 2 * i, 64 + i))
        a("v_and_b32 v%d, 0xffff0000, v%d" % (35 + 2 * i, 64 + i))
    for i in range(16): a("v_mul_f32 v%d, v%d, v15" % (34 + i, 34 + i))
    for i in range(8): a("v_cvt_pk_bf16_f32 v%d, v%d, v%d" % (64 + i, 34 + 2 * i, 35 + 2 * i))
    dg.t(3)
    a("v_cmp_gt_u32 vcc, 32, v0")
    for s_, FR in enumerate((F1, F2)):
        for jj in (0, 4, 1, 5, 2, 6, 3, 7): a(mfma16(AC + 4 * jj, 64 + 4 * s_, FR[jj], s_ == 0))
    for j in range(4):
        for r in range(4): a("v_cndmask_b32 v%d, v%d, v%d, vcc" % (AC + 4 * j + r, AC + 4 * (j + 4) + r, AC + 4 * j + r))
    dg.t(15)
    a("s_setprio %d" % cfg.get("aprio2b", 3))
    def twrite():
        for j in range(4): a("ds_write_b128 v%d, %s offset:%d" % (136 + j, q4(AC + 4 * j), j * 512))
        a("s_mov_b64 exec, 1")
        a("ds_write_b32 v10, v11 offset:%d" % (M.F_MF1 - M.FLG))
        a("s_mov_b64 exec, -1")
    def dloads():
        if cfg.get("dsl"): a("s_sleep %d" % cfg["dsl"])
        for j in range(7): dl(j, 45)
    if SINGLE:
        twrite()
        dg.t(1)
        a("F_t4:")
        spin_guard(a)
        a("ds_read_b32 v12, v13 offset:%d" % (M.F_MF1 - M.FLG))
        for w in range(4): a("ds_read_b128 %s, v140 offset:%d" % (q4(80 + 4 * w), mso(w)))
        a("s_waitcnt lgkmcnt(0)")
        a("v_cmp_eq_u32 vcc, 0, v12")
        a("s_cbranch_vccnz F_t4")
        dg.t(9)
        for i in range(4):
            a("v_add_f32 v%d, v%d, v%d" % (80 + i, 80 + i, 84 + i))
            a("v_add_f32 v%d, v%d, v%d" % (88 + i, 88 + i, 92 + i))
        for i in range(4): a("v_add_f32 v%d, v%d, v%d" % (72 + i, 80 + i, 88 + i))
    else:
        mgate3(102)
        a("s_cmp_lt_u32 s3, 2")
        a("s_cbranch_scc1 F_t1")
        twrite()
        if DS == 3: dloads()
        a("s_branch F_t2")
        a("F_t1:")
        if DS == 3: dloads()
        a("F_t3:")
        spin_guard(a)
        a("ds_read_b32 v12, v8 offset:%d" % (M.F_MF1 - M.FLG))
        for j in range(4): a("ds_read_b128 %s, v%d offset:%d" % (q4(80 + 4 * j), 136 + j, j * 512))
        a("s_waitcnt lgkmcnt(0)")
        a("v_cmp_eq_u32 vcc, 0, v12")
        a("s_cbranch_vccnz F_t3")
        for i in range(16): a("v_add_f32 v%d, v%d, v%d" % (AC + i, AC + i, 80 + i))
        twrite()
        a("F_t2:")
        dg.t(1)
        a("F_t4:")
        spin_guard(a)
        a("ds_read_b32 v12, v141 offset:%d" % (M.F_MF1 - M.FLG))
        a("ds_read_b128 v[80:83], v140")
        a("ds_read_b128 v[84:87], v140 offset:4096")
        a("s_waitcnt lgkmcnt(0)")
        a("v_cmp_eq_u32 vcc, 0, v12")
        a("s_cbranch_vccnz F_t4")
        dg.t(9)
        for i in range(4): a("v_add_f32 v%d, v%d, v%d" % (72 + i, 80 + i, 84 + i))
    if cfg.get("pg"): (mgate3 if cfg["pg"] < 200 else mgate2)(cfg["pg"])
    a("buffer_store_dwordx4 v[72:75], v2, s[12:15], s77 offen sc0 sc1")
    dg.t(12)
    fset(10, 4, 2, off=M.F_MF1 - M.FLG)
    if DS == 1:
        assert wn[0] == 16 and not DE
        if cfg.get("dg"): mgate3(cfg["dg"])
        for j in range(7): dl(j, 45)
    a("s_waitcnt vmcnt(%d)" % (7 if DS == 1 else 0))
    a("""
    s_mov_b64 exec, 1
    ds_add_rtn_u32 v9, v9, v11
    s_waitcnt lgkmcnt(0)
    v_readfirstlane_b32 s44, v9
    s_mov_b64 exec, -1
    s_cmp_lg_u32 s44, 3
    s_cbranch_scc1 F_ad2
    """)
    s_signal(a, 56, 74)
    a("s_branch F_ad2")
    a("F_adown:")
    if DS and DS != 4:
        for j in range(7): dl(j, 45)
    fset(10, 4, 2, off=M.F_MF1 - M.FLG)
    a("F_ad2:")
    dg.t(4)
    if R2:
        a("s_cmp_le_u32 s33, %d" % (32 - R2))
        a("s_cbranch_scc1 F_dn")
        a("s_cmp_lg_u32 s3, 0")
        a("s_cbranch_scc1 F_end")
        a("s_lshl_b32 s46, s39, 9")
        a("s_waitcnt lgkmcnt(0)")
        s_addr(a, 56, 46, M.KV_OFF + M.R_Y)
        s_signal(a, 56, 44)
        a("s_endpgm")
        a("F_dn:")
    log[:] = []
    if not DE and not DS: stream(23)
    a("""
    v_min_u32 v4, 55, v0
    v_lshlrev_b32 v4, 4, v4
    s_lshl_b32 s38, s47, 5
    s_and_b32 s46, s39, 3
    s_lshr_b32 s44, s47, 7
    s_lshl_b32 s44, s44, 2
    s_add_u32 s44, s44, s46
    s_lshl_b32 s44, s44, 7
    s_add_u32 s45, s47, 111
    s_lshr_b32 s45, s45, 7
    s_lshl_b32 s45, s45, 2
    s_add_u32 s45, s45, s46
    s_lshl_b32 s45, s45, 7
    s_waitcnt lgkmcnt(0)
    """)
    s_addr(a, 56, 44, M.KV_OFF + C_PRE)
    s_addr(a, 58, 45, M.KV_OFF + C_PRE)
    PA = 32; WD = 72
    for i in range(4): a("v_mov_b32 v%d, 0" % (WR[7] + i))
    a("s_mov_b32 s48, 0x%x" % (LOG2E ^ 0x80000000))
    if P["ms_at"]: flag_wait(a, 12, 13, P["ms_at"], sleep=1)
    if not P["ms_at"] or P["kva"] != P["kx"]:
        flag_wait(a, 12, 13, 2, sleep=1, off=M.F_MF1 - M.FLG)
        mgate3(102)
    a("""
    s_mov_b32 s44, s75
    v_lshlrev_b32 v9, 3, v0
    v_add_u32 v9, s44, v9
    ds_write_b64 v9, v[%d:%d]
    v_lshrrev_b32 v11, 1, v0         ; f
    v_mul_u32_u24 v9, 37, v11
    v_lshrrev_b32 v9, 8, v9
    v_add_u32 v11, v11, v9
    v_lshlrev_b32 v11, 1, v11
    v_and_b32 v9, 1, v0
    v_lshl_add_u32 v11, v9, 8, v11
    v_add_u32 v11, s44, v11          ; h write addr
    v_and_b32 v9, 7, v0
    v_lshlrev_b32 v9, 6, v9
    v_lshl_add_u32 v9, v5, 4, v9
    v_add_u32 v9, s44, v9            ; h read addr
    """ % (WR[7], WR[7] + 1))
    a("s_setprio %d" % cfg.get("aprio2c", 1))
    a("s_waitcnt vmcnt(0)")
    for jj in range(8):
        for pp in range(4):
            a("v_perm_b32 v%d, v%d, v%d, s%d" % (72 + 4 * jj + pp, WR[2 * pp + 1] + (jj >> 1), WR[2 * pp] + (jj >> 1), 52 + (jj & 1)))
    a("""
    v_and_b32 v16, 1, v5
    v_lshlrev_b32 v16, 11, v16
    v_lshl_add_u32 v16, v7, 5, v16
    v_lshrrev_b32 v8, 1, v5
    v_lshl_add_u32 v16, v8, 4, v16
    v_add_u32 v16, s75, v16          ; partial write addr
    s_lshl_b32 s44, s3, 10
    s_add_u32 s44, s44, %d
    v_add_u32 v17, s44, v3           ; partial read addr
    v_add_u32 v18, %d, v17
    v_mov_b32 v19, 1
    s_lshl_b32 s60, s3, 13
    s_lshl_b32 s45, s39, 9
    s_add_u32 s60, s60, s45
    s_add_u32 s60, s60, %d
    s_add_u32 s61, s60, 4096
    """ % (MS[0], MS[1] - MS[0], M.Y_REL))
    s_addr(a, 62, 45, M.KV_OFF + M.R_Y)
    YST = cfg.get("yst", 1)
    if YST:
        a.srd(84, 72, MB, M.YP_OFF)
        a("""
        v_add_u32 v17, s44, v2
        v_lshrrev_b32 v18, 5, v0
        v_and_b32 v8, 31, v0
        v_lshlrev_b32 v8, 4, v8
        v_lshl_add_u32 v18, v18, 14, v8
        s_lshl_b32 s60, s39, 17
        s_lshl_b32 s61, s3, 15
        s_add_u32 s60, s60, s61
        s_lshr_b32 s61, s2, 6
        s_lshl_b32 s61, s61, 3
        s_add_u32 s61, s61, s30          ; ti
        s_lshl_b32 s61, s61, 9
        s_add_u32 s60, s60, s61
        """)
    a("s_setprio %d" % cfg.get("aprio3", 3))
    a("s_cmp_lg_u32 s3, 0")
    a("s_cbranch_scc1 F_pp")
    a("F_p1:")
    spin_guard(a)
    a("s_load_dword s76, s[56:57], 0 glc")
    a("s_load_dword s77, s[58:59], 0 glc")
    a("s_waitcnt lgkmcnt(0)")
    a("s_min_u32 s76, s76, s77")
    a("s_cmp_ge_u32 s76, 8")
    a("s_cbranch_scc1 F_p2")
    a("s_sleep %d" % cfg.get("psleep", 2))
    a("s_branch F_p1")
    a("F_p2:")
    fset(10, 12, 3, off=M.F_MF1 - M.FLG)
    a("F_pp:")
    a("v_mov_b32 v8, %d" % M.F_MF1)
    flag_wait(a, 12, 8, 3, sleep=cfg.get("pfs", 1))
    if cfg.get("lg"): mgate2(cfg["lg"])
    dg.t(13)
    for pm in range(8):
        a("s_add_u32 s45, s38, %d" % (pm * 3584 * 32))
        a("buffer_load_dwordx4 %s, v4, s[12:15], s45 offen sc0 sc1" % q4(PA + 4 * pm))
    a("s_waitcnt vmcnt(0)")
    dg.t(5)
    for mat in range(2):
        for i in range(4):
            r0 = PA + 4 * mat + i
            a("v_add_f32 v%d, v%d, v%d" % (r0, r0, r0 + 8))
            a("v_add_f32 v%d, v%d, v%d" % (r0 + 16, r0 + 16, r0 + 24))
        for i in range(4):
            r0 = PA + 4 * mat + i
            a("v_add_f32 v%d, v%d, v%d" % (r0, r0, r0 + 16))
    Gr, U, E = PA, PA + 4, PA + 8
    n = 4
    for i in range(n): a("v_cvt_pk_bf16_f32 v%d, v%d, v%d" % (E + i, Gr + i, U + i))
    for i in range(n):
        a("v_lshlrev_b32 v%d, 16, v%d" % (Gr + i, E + i))
        a("v_and_b32 v%d, 0xffff0000, v%d" % (U + i, E + i))
    for i in range(n): a("v_mul_f32 v%d, s48, v%d" % (E + i, Gr + i))
    for i in range(n): a("v_exp_f32 v%d, v%d" % (E + i, E + i))
    for i in range(n): a("v_add_f32 v%d, 1.0, v%d" % (E + i, E + i))
    for i in range(n): a("v_rcp_f32 v%d, v%d" % (E + i, E + i))
    for i in range(n): a("v_mul_f32 v%d, v%d, v%d" % (Gr + i, Gr + i, E + i))
    for i in range(n): a("v_cvt_pk_bf16_f32 v%d, v%d, v%d" % (Gr + i, Gr + i, Gr + i))
    for i in range(n): a("v_lshlrev_b32 v%d, 16, v%d" % (Gr + i, Gr + i))
    for i in range(n): a("v_mul_f32 v%d, v%d, v%d" % (Gr + i, Gr + i, U + i))
    for i in range(n): a("v_cvt_pk_bf16_f32 v%d, v%d, v%d" % (Gr + i, Gr + i, Gr + i))
    a("s_mov_b32 exec_hi, 0xffffff")
    for i in range(n): a("ds_write_b16 v11, v%d offset:%d" % (Gr + i, i * 64))
    a("s_mov_b64 exec, -1")
    H = 64
    a("ds_read_b128 %s, v9" % q4(H))
    a("v_cmp_gt_u32 vcc, 32, v0")
    a("s_waitcnt lgkmcnt(0)")
    AC = 104; WD = 136
    for jj in (0, 4, 1, 5, 2, 6, 3, 7): a(mfma16(AC + 4 * jj, H, 72 + 4 * jj, True))
    for j in range(4):
        for r in range(4):
            a("v_cndmask_b32 v%d, v%d, v%d, vcc" % (WD + 4 * r + j, AC + 4 * (j + 4) + r, AC + 4 * j + r))
    for r in range(4): a("ds_write_b128 v16, %s offset:%d" % (q4(WD + 4 * r), r * 512))
    a("s_mov_b64 exec, 1")
    a("ds_write_b32 v10, v19 offset:%d" % (M.F_MF2 - M.FLG))
    a("s_mov_b64 exec, -1")
    a("F_d1:")
    spin_guard(a)
    a("ds_read_b32 v12, v13 offset:%d" % (M.F_MF2 - M.FLG))
    for w in range(4):
        if YST: a("ds_read_b128 %s, v17 offset:%d" % (q4(PA + 4 * w), mso(w)))
        else:
            for i in (0, 2):
                a("ds_read2st64_b32 %s, v%d offset0:%d offset1:%d" % (pr(PA + 4 * w + i), 17 + (w >> 1), (w & 1) * 16 + i, (w & 1) * 16 + i + 1))
    a("s_waitcnt lgkmcnt(0)")
    a("v_cmp_eq_u32 vcc, 0, v12")
    a("s_cbranch_vccnz F_d1")
    for i in range(4):
        a("v_add_f32 v%d, v%d, v%d" % (PA + i, PA + i, PA + 4 + i))
        a("v_add_f32 v%d, v%d, v%d" % (PA + 8 + i, PA + 8 + i, PA + 12 + i))
    if cfg.get("yg") == 1: flag_wait(a, 12, 13, 1, sleep=1, off=M.F_P3 - M.FLG)
    elif cfg.get("yg"): mgate2(cfg["yg"])
    for i in range(4):
        a("v_add_f32 v%d, v%d, v%d" % (PA + i, PA + i, PA + 8 + i))
        if not YST: a("buffer_atomic_add_f32 v%d, v3, s[24:27], s%d offen offset:%d" % (PA + i, 60 + (i >> 1), (i & 1) * 256))
    if YST: a("buffer_store_dwordx4 %s, v18, s[84:87], s60 offen sc0 sc1" % q4(PA))
    dg.t(14)
    a("""
    v_mov_b32 v4, %d
    v_mov_b32 v8, 1
    s_waitcnt vmcnt(0)
    s_mov_b64 exec, 1
    ds_add_rtn_u32 v9, v4, v8
    s_waitcnt lgkmcnt(0)
    v_readfirstlane_b32 s44, v9
    s_mov_b64 exec, -1
    s_cmp_lg_u32 s44, 3
    s_cbranch_scc1 F_ye
    s_mov_b32 s44, 1
    s_atomic_add s44, s[62:63], 0
    s_atomic_add s44, s[62:63], 0x80
    s_atomic_add s44, s[62:63], 0x100
    s_atomic_add s44, s[62:63], 0x180
    F_ye:
    """ % (M.F_Y + 4))
    dg.t(7)
    if dg.on:
        a('s_cmp_lg_u32 s3, 2')
        a('s_cbranch_scc1 F_end')
        dg.out(2)
    a("s_endpgm")
```

```python
from common import *


def compute(a, env):
    import g4 as M
    cfg = env["cfg"]; P = env["P"]; AL = env["AL"]; QO = env["QO"]; NST = env["NST"]
    dg = env["dg"]; dc = env["dc"]; fset = env["fset"]; KX = env["KX"]
    dg.mark = cfg.get("mark")
    OPA = 12; OPB = 44; TB = 68; KAC = 100; VAC = 132
    FL = M.FLG
    def acc(kind, nb, rb): return {1: KAC, 2: VAC}[kind] + nb * 16 + rb * 4
    a('s_setprio %d' % cfg.get('cprio', 2))
    a("""
    s_lshr_b32 s36, s3, 1            ; wr
    s_and_b32 s37, s3, 1             ; wh
    v_and_b32 v1, 15, v0             ; row16
    v_lshrrev_b32 v2, 4, v0          ; q
    v_lshrrev_b32 v3, 1, v1          ; g(row)
    v_xor_b32 v3, v3, v2
    v_lshlrev_b32 v3, 4, v3
    v_lshlrev_b32 v1, 7, v1
    s_lshl_b32 s38, s36, 13
    v_add3_u32 v4, v1, v3, s38       ; addrA ks=0 window 0
    v_xor_b32 v5, 64, v4             ; ks=1
    v_add_u32 v6, 0x10000, v4
    v_add_u32 v7, 0x10000, v5
    v_bfe_u32 v1, v0, 2, 2           ; r
    v_lshl_add_u32 v3, v2, 3, v1     ; row = 8q + r
    v_lshrrev_b32 v1, 1, v1
    v_and_b32 v2, 1, v2
    v_lshl_add_u32 v1, v2, 1, v1     ; f(row)
    s_lshl_b32 s38, s37, 1
    s_add_u32 s38, s38, s36          ; piece of nb'=0 : 2wh + wr
    v_xor_b32 v1, s38, v1
    v_lshlrev_b32 v1, 5, v1
    v_lshl_add_u32 v1, v3, 7, v1
    v_and_b32 v2, 3, v0
    v_lshl_add_u32 v1, v2, 3, v1
    v_add_u32 v8, 0x10000, v1        ; addrB nb'=0 window 64K
    v_xor_b32 v9, 32, v8             ; nb'=1
    v_add_u32 v10, 0x8000, v8        ; window 96K
    v_add_u32 v11, 0x8000, v9
    s_mov_b32 s40, 0x%x              ; 2^-60 / log2e
    s_mov_b32 s41, s40
    s_mov_b32 s74, 0x%x              ; eps
    s_mov_b32 s75, s74
    s_mov_b32 s76, 0x%x              ; 2^60
    s_mov_b32 s77, s76
    v_and_b32 v164, 0x30, v0
    s_lshl_b32 s42, s36, 8
    s_add_u32 s42, s42, %d
    v_add_u32 v164, s42, v164        ; row table addr for (wr, q): + rb*64
    v_and_b32 v165, 15, v0
    v_lshlrev_b32 v165, 2, v165
    s_lshl_b32 s42, s38, 6
    s_add_u32 s42, s42, %d
    v_add_u32 v165, s42, v165        ; CL addr for nb'=0 ; xor 64 for nb'=1
    s_lshl_b32 s42, s3, 2
    s_add_u32 s42, s42, %d
    v_mov_b32 v3, s42                ; own flag column (FLG + 4w)
    v_lshlrev_b32 v1, 2, v2
    v_add_u32 v1, %d, v1             ; 4-word flag read base
    v_xor_b32 v2, 64, v165
    s_lshl_b32 s44, s33, 1
    s_add_u32 s44, s44, s37          ; kv head
    s_lshl_b32 s45, s44, 12
    s_mul_i32 s46, s36, 3072
    s_add_u32 s46, s46, s45          ; tile (wr*2 + wr) for db'=0
    s_lshl_b32 s47, s36, 10
    s_add_u32 s47, s47, 1024
    s_add_u32 s47, s47, s45          ; tile (wr*2 + (1^wr)) for db'=1
    s_lshl_b32 s48, s36, 6
    s_add_u32 s48, s48, 0x20000
    s_lshl_b32 s49, s44, 7
    s_add_u32 s48, s48, s49          ; z part
    s_lshl_b32 s49, s44, 10          ; kv counters of this head
    s_lshl_b32 s52, s3, 11
    s_add_u32 s52, s52, %d           ; own exchange slot
    s_lshl_b32 s53, s3, 7
    s_lshl_b32 s43, s36, 6
    s_add_u32 s53, s53, s43
    s_add_u32 s53, s53, %d           ; z exchange
    s_mov_b32 s50, %d
    s_waitcnt lgkmcnt(0)
    s_lshl_b32 s64, s28, 7
    s_lshl_b32 s65, s3, 5
    s_add_u32 s64, s64, s65          ; R0 = i3*128 + 32w
    s_lshl_b32 s42, s64, 11
    s_lshl_b32 s65, s29, 7
    s_add_u32 s42, s42, s65          ; soffset rb0
    s_add_u32 s43, s42, 0x8000       ; soffset rb1
    s_lshl_b32 s66, s44, 1
    s_add_u32 s66, s66, s36
    s_lshl_b32 s66, s66, 4
    s_add_u32 s66, s66, s32
    s_lshl_b32 s66, s66, 10          ; partial slot [head][eb=wr][i]
    """ % (f32(2.0 ** -60 / 1.4426950408889634), EPS6, f32(2.0 ** 60), M.NML, M.CL, FL, FL, KX, M.ZX, M.F_SC + 12 - (M.F_KX - FL)))
    if cfg.get("pk"):
        a("s_and_b32 s65, s32, %d" % (cfg["pk"] - 1))
        a("s_lshl_b32 s65, s65, 11")
        a("s_add_u32 s65, s65, s45")
        a("s_mul_i32 s46, s36, 1536")
        a("s_add_u32 s46, s46, s65")
        a("s_lshl_b32 s47, s36, 9")
        a("s_add_u32 s47, s47, 512")
        a("s_add_u32 s47, s47, s65")
    assert M.CL % 128 == 0 and KX % 8192 == 0 and M.ZX % 512 == 0 and FL % 16 == 0
    XB = cfg.get("xb", 0)
    a.srd(12, 4, 0 if XB & 1 else 2048 * 2048)
    a.srd(16, 6, 1024 * 6144)
    a.srd(20, 8, 0 if XB & 2 else 512 * 2048 if XB & 32 else 1024 * 2048)
    a.srd(24, 72, M.ZB, M.KV_OFF)
    a.srd(84, 72, MB, M.KVP_OFF)
    if dg.on: a("v_writelane_b32 v166, s96, 0")
    def rdA(gr, ks, b, rb):
        base = gr * G
        w = 1 if base >= 65536 else 0
        return "ds_read_b128 %s, v%d offset:%d" % (q4(b + 4 * rb), 4 + 2 * w + ks, base - w * 65536 + rb * 2048)
    def rdB(gr, ks, nb, slot):
        base = gr * G
        assert base >= 65536
        w = 1 if base >= 98304 else 0
        return ["ds_read_b64_tr_b16 %s, v%d offset:%d" % (pr(OPB + 4 * slot + 2 * h), 8 + 2 * w + nb, base - 65536 - w * 32768 + ks * 4096 + h * 512) for h in range(2)]
    S = LgkmStream(a)
    GR = [(1, 0), (1, 1), (2, 0), (2, 1)]
    NU = 32
    def abuf(u): return OPA + 16 * (u & 1)
    def bread(x):
        u = x // 4; kind, nb = GR[x % 4]
        return rdB(AL[("QKV"[kind], u // 2)][0], u % 2, nb, x % 6)
    for w in range(4 if cfg.get("nev", 0) else 0):
        lab = a.label("EV")
        a("s_cmp_lg_u32 s3, %d" % w)
        a("s_cbranch_scc1 %s" % lab)
        for k_ in range(cfg.get("nev", 0)): a("; @@VISIT:e:%d@@" % (k_ * 4 + w))
        a("%s:" % lab)
    a("; @@PRI:e:2@@")
    if cfg.get("diag2") == 5: dc.t(0)
    a("s_barrier")
    if cfg.get("diag2") == 1: dc.t(0)
    S.emit(rdA(AL[("X", 0)][0], 0, abuf(0), 0))
    for r in bread(0): S.emit(r)
    for rb in range(1, 4): S.emit(rdA(AL[("X", 0)][0], 0, abuf(0), rb))
    for x_ in range(1, 4):
        for r in bread(x_): S.emit(r)
    nb_iss = 4
    x = 0
    BP = cfg.get("bp", 2)
    CSR = OPB + 4 * ((4 * NU) % 6)
    assert (4 * NU) % 6 <= 4
    EA = OPA
    tail_ds = []
    for rb in range(4):
        tail_ds.append("ds_read_b128 %s, v164 offset:%d" % (q4(TB + 8 * rb), rb * 64))
        if rb == 0:
            for kind in (1, 2):
                for nb in range(2):
                    tail_ds.append("ds_read2_b32 %s, v%d offset0:%d offset1:%d" % (pr(CSR + 4 * (kind - 1) + 2 * nb), (165, 2)[nb], kind * 64, kind * 64))
        tail_ds.append("ds_read_b128 %s, v164 offset:%d" % (q4(TB + 8 * rb + 4), 1024 + rb * 64))
    ONES = EA + 8
    tail_v = """
    v_lshlrev_b32 v18, 4, v0
    v_add_u32 v12, s52, v18
    v_xor_b32 v13, 4096, v12
    v_and_b32 v14, 0x30, v0
    v_add_u32 v14, s53, v14
    v_xor_b32 v15, 64, v14
    v_lshlrev_b32 v19, 2, v0
    v_add_u32 v16, s53, v19
    v_xor_b32 v17, 256, v16
    v_xor_b32 v18, 8, v3
    v_writelane_b32 v18, s50, 1
    v_mov_b32 v20, 0x3f803f80
    v_mov_b32 v21, 0x3f803f80
    v_mov_b32 v22, 0x3f803f80
    v_mov_b32 v23, 0x3f803f80
    v_mov_b32 v24, 1
    v_and_b32 v4, 15, v0
    v_bfe_u32 v5, v0, 4, 1
    v_lshlrev_b32 v5, 5, v5
    v_lshrrev_b32 v6, 5, v0
    v_lshl_add_u32 v5, v6, 4, v5
    v_lshl_add_u32 v7, v4, 11, v5
    v_lshlrev_b32 v6, 4, v0
    v_and_b32 v8, 0x300, v6
    v_lshl_add_u32 v8, v4, 2, v8
    """.strip().split("\n")
    for u in range(NU):
        g, ks = u // 2, u % 2
        rq = []
        opened = (ks == 0)
        aq = False
        k = 0
        if u == NU - 2: S.emit("ds_read_b32 v%d, v1 offset:%d" % (TB, M.F_SC - FL))
        for gi, (kind, nb) in enumerate(GR):
            for rb in range(4):
                if not opened and k == BP:
                    assert not rq
                    S.drain()
                    if g < 15 and cfg.get("diag2") in (1, 5): dc.t(g + 1)
                    if g in (0, 7): dg.t(1 + g // 7)
                    a("s_barrier")
                    opened = True
                    if u == NU - 1 and not cfg.get("p1only"):
                        lab = a.label("SCK")
                        a("v_cmp_gt_u32 vcc, 1, v%d" % TB)
                        a("s_and_b32 vcc_lo, vcc_lo, 3")
                        a("s_cbranch_scc0 %s" % lab)
                        a("v_and_b32 v%d, 1, v0" % (TB + 1))
                        a("v_lshlrev_b32 v%d, 2, v%d" % (TB + 1, TB + 1))
                        a("v_add_u32 v%d, %d, v%d" % (TB + 1, M.F_SC, TB + 1))
                        flag_wait(a, TB, TB + 1, 1)
                        a("%s:" % lab)
                        rq = list(tail_ds)
                if opened and u + 1 < NU:
                    def pull():
                        nonlocal nb_iss
                        while nb_iss < 4 * (u + 2) and nb_iss - 6 < x:
                            rq.extend(bread(nb_iss)); nb_iss += 1
                    if not aq:
                        A_ = [rdA(AL[("X", (u + 1) // 2)][0], (u + 1) % 2, abuf(u + 1), r_) for r_ in range(4)]
                        rq.append(A_[0]); pull(); rq[3:3] = A_[1:]
                        aq = True
                    pull()
                S.emit(mfma16(acc(kind, nb, rb), abuf(u) + 4 * rb, OPB + 4 * (x % 6), u == 0))
                k += 1
                if rq: S.emit(rq.pop(0))
                if u == NU - 1:
                    for _ in range(1 if rq else 2):
                        if tail_v: a(tail_v.pop(0))
            x += 1
        for r in rq: S.emit(r)
    for x_ in tail_v: a(x_)
    a("; @@PRI:l:1:DENS@@")
    dg.t(3, S)
    if cfg.get("xsl3"): a("s_sleep %d" % cfg["xsl3"])
    if cfg.get("cpe") is not None: a("s_setprio %d" % cfg["cpe"])
    if cfg.get("p1only"):
        a('s_cmp_lg_u32 s3, 0')
        a('s_cbranch_scc1 F_end')
        dg.out(0)
        dc.out(3)
        a("s_endpgm")
    d4 = dc if cfg.get("diag2") == 4 else Diag(a, 0, 0)
    d4.t(0, S)
    T = 28
    def PK(db, u): return KAC + 16 * db + 4 * u
    def VP(eb, u): return VAC + 16 * eb + 4 * u
    fr = [OPB + 4 * s_ for s_ in range(6) if not (CSR <= OPB + 4 * s_ < CSR + 8)]
    def KVD(eb, db): return fr[eb * 2 + db]
    def ZD(db): return TB + 4 * db
    KT_ = cfg.get("kt", 1)
    def mm(d, x_, y_, f): return mfma16(d, y_, x_, f) if KT_ else mfma16(d, x_, y_, f)
    def kvm(u): return [mm(KVD(1, db), PK(db, u), VP(1, u), u == 0) for db in range(2)] + [mfma16(ZD(db), PK(db, u), ONES, u == 0) for db in range(2)] + [mm(KVD(0, db), PK(db, u), VP(0, u), u == 0) for db in range(2)]
    for rb in range(4):
        b = TB + 8 * rb
        for kind in (1, 2):
            for nb in range(2):
                d = acc(kind, nb, rb)
                for h in (0, 2):
                    S.emit("v_pk_fma_f32 %s, %s, %s, %s" % (pr(d + h), pr(b + h), pr(CSR + 4 * (kind - 1) + 2 * nb), pr(d + h)))
        for kind in (1, 2):
            for nb in range(2):
                d = acc(kind, nb, rb)
                for h in (0, 2):
                    S.emit("v_pk_mul_f32 %s, %s, %s" % (pr(d + h), pr(d + h), pr(b + 4 + h)))
        ph = phi([acc(1, nb, rb) + h for nb in range(2) for h in (0, 2)], T + 8 * (rb & 1))
        mq = (kvm(0)[:3] if rb == 2 else kvm(0)[3:] if rb == 3 else []) if cfg.get("kvi", 1) else []
        for i_, x_ in enumerate(ph[:8]):
            if mq and i_ % 2 == 0: a(mq.pop(0))
            a(x_)
        for nb in range(2):
            for x_ in pack_list(VAC + 16 * nb + 2 * rb, acc(2, nb, rb), 4): a(x_)
        for x_ in ph[8:]: a(x_)
        for nb in range(2):
            for x_ in pack_list(KAC + 16 * nb + 2 * rb, acc(1, nb, rb), 4): a(x_)
        d4.t(1 + rb, S)
    if not cfg.get("kvi", 1):
        for x_ in kvm(0): a(x_)
    for x_ in kvm(1): a(x_)
    XRL = [140, 144, 156, 160]
    def xload():
        for g_ in range(4):
            a("buffer_load_dwordx4 %s, v7, s[12:15], s%d offen offset:%d" % (q4(XRL[g_]), 42 + g_ // 2, (g_ % 2) * 64))
    XE = cfg.get("xe", 1)
    if XE in (1, 3, 4): xload()
    d4.t(5)
    for db in range(2): a("ds_write_b128 v12, %s offset:%d" % (q4(KVD(1, db)), db * 1024))
    d4.t(6)
    a("s_mov_b32 exec_lo, 0x10001")
    a("s_mov_b32 exec_hi, 0x10001")
    a("ds_write_b128 v14, %s" % q4(ZD(0)))
    a("ds_write_b128 v15, %s" % q4(ZD(1)))
    a("s_mov_b64 exec, 1")
    a("ds_write_b32 v3, v24 offset:%d" % (M.F_KX - FL))
    a("s_mov_b64 exec, -1")
    d4.t(7)
    RX = 28
    a("F_xw:")
    spin_guard(a)
    a("ds_read_b32 v25, v18 offset:%d" % (M.F_KX - FL))
    a("ds_read_b128 %s, v13 offset:1024" % q4(RX))
    a("ds_read_b128 %s, v13" % q4(RX + 4))
    a("ds_read_b32 v26, v16")
    a("ds_read_b32 v27, v17")
    a("s_waitcnt lgkmcnt(4)")
    a("v_cmp_eq_u32 vcc, 0, v25")
    a("s_cbranch_vccz F_xx")
    a("s_waitcnt lgkmcnt(0)")
    a("s_branch F_xw")
    a("F_xx:")
    d4.t(8)
    GA = cfg.get("ga", 0)
    PKR = cfg.get("pk", 0)
    NAT = 2 if GA else 5 if PKR else 9
    for db in range(2):
        a("s_waitcnt lgkmcnt(%d)" % (3 - db))
        for r in range(4):
            d = KVD(0, db) + r
            a("v_add_f32 v%d, v%d, v%d" % (d, d, RX + 4 * db + r))
        if GA:
            for x_ in pack_list(36 + 2 * db, KVD(0, db), 4): a(x_)
        elif PKR:
            for x_ in pack_list(36 + 2 * db, KVD(0, db), 4): a(x_)
            for r in range(2):
                a("buffer_atomic_pk_add_bf16 v%d, v19, s[24:27], s%d offen offset:%d" % (36 + 2 * db + r, 46 + db, r * 256))
        else:
            if XB & 4 and db == 1: a("s_mov_b32 s47, 0x7ff00000")
            for r in range(4):
                a("buffer_atomic_add_f32 v%d, v%d, s[24:27], s%d offen offset:%d" % (KVD(0, db) + r, 8 if KT_ else 19, 46 + db, r * (64 if KT_ else 256)))
    if GA: a("buffer_store_dwordx4 v[36:39], v6, s[84:87], s66 offen sc0 sc1")
    a("s_waitcnt lgkmcnt(0)")
    a("v_add_f32 v26, v26, v27")
    a("s_mov_b64 exec, 0xffff")
    a("buffer_atomic_add_f32 v26, v19, s[24:27], s48 offen")
    a("s_mov_b64 exec, 1")
    a("ds_add_u32 v3, v24 offset:%d" % (M.F_KX - FL))
    a("s_mov_b64 exec, -1")
    dg.t(4)
    d4.t(9)
    if XE not in (1, 3, 4): xload()
    a("s_setprio %d" % cfg.get("cprio2", 2))
    AC3 = 100
    a("""
    v_mov_b32 v2, v7                 ; epilogue voffset
    s_lshl_b32 s47, s3, 7
    s_add_u32 s47, s47, NM3A
    v_lshlrev_b32 v5, 2, v4
    v_add_u32 v5, s47, v5
    ds_read2_b32 v[76:77], v5 offset0:0 offset1:128
    ds_read2_b32 v[78:79], v5 offset0:16 offset1:144
    v_lshrrev_b32 v4, 3, v0          ; r
    v_and_b32 v5, 7, v0              ; c
    v_lshrrev_b32 v6, 1, v4          ; r>>1
    v_lshlrev_b32 v7, 1, v6
    v_xor_b32 v7, v5, v7
    v_lshlrev_b32 v7, 4, v7
    v_lshl_add_u32 v40, v4, 11, v7   ; wo voffset
    v_and_b32 v6, 1, v6
    v_lshlrev_b32 v6, 1, v6
    v_xor_b32 v41, v5, v6
    v_xor_b32 v42, 4, v41
    v_lshlrev_b32 v41, 4, v41
    v_lshlrev_b32 v42, 4, v42
    v_mul_u32_u24 v7, 6144, v4
    v_add_u32 v41, v41, v7           ; W voffset even
    v_add_u32 v42, v42, v7
    v_add_u32 v42, 49152, v42        ; odd
    s_mul_i32 s56, s3, %d
    s_lshl_b32 s47, s10, 7
    s_add_u32 s56, s56, s47          ; Wq base
    s_lshl_b32 s57, s29, 7
    s_lshl_b32 s47, s3, 15
    s_add_u32 s57, s57, s47          ; wo base
    s_and_b32 s81, s28, RMASK
    s_mul_i32 s81, s81, ROTA         ; rotation (tiles)
    s_lshr_b32 s47, s28, RSH
    s_mul_i32 s47, s47, %d
    s_add_u32 s81, s81, s47
    s_lshl_b32 s78, s3, 11
    s_lshl_b32 s44, s10, 1
    s_add_u32 s44, s44, s37          ; q head
    s_lshl_b32 s45, s44, 12
    s_mov_b32 s52, s45
    s_lshl_b32 s53, s44, 7
    s_add_u32 s53, s53, 0x20000
    s_lshl_b32 s51, s44, 3
    s_and_b32 s47, s32, RKM
    s_add_u32 s51, s51, s47
    s_lshl_b32 s51, s51, 7
    v_xor_b32 v18, 8, v3
    v_mov_b32 v25, 0
    """.replace("RKM", str(cfg.get("rk", 4) - 1)).replace("RMASK", "7" if cfg.get("map3") else "3").replace("RSH", "3" if cfg.get("map3") else "2").replace("NM3A", str(M.NM3)).replace("ROTA", str(cfg.get("rot", 0))) % (16 * 6144, cfg.get("rotb", 0)))
    s_addr(a, 54, 51, M.KV_OFF + M.R_KV)
    s_addr(a, 82, 49, M.KV_OFF + M.R_KV)
    def cpwait(c):
        if c <= 0: return
        lab = a.label("CW")
        a("v_cmp_gt_u32 vcc, %d, v25" % c)
        a("s_cbranch_vccz %s" % lab)
        flag_wait(a, 25, 1, c, sleep=cfg.get("cs", 2), off=M.F_CP - FL)
        a("%s:" % lab)
    nv = 0
    wq = [x_ for x_ in P["acts"] if x_[1] == "wq"]
    wo = sorted([x_ for x_ in P["acts"] if x_[1] == "wo"])
    for (c, _, n, gr) in wq:
        g = QO[n]
        cpwait(c)
        a("s_bfe_u32 s47, s%d, 0x%x" % (94 + g // 8, (4 << 16) | (4 * (g % 8))))
        a("s_add_u32 s47, s89, s47")
        a("s_and_b32 s47, s47, 15")
        a("s_mul_i32 s47, s47, %d" % (64 * 6144))
        a("s_add_u32 m0, s78, %d" % (gr * G))
        a("s_add_u32 s47, s47, s56")
        a("buffer_load_dwordx4 v41, s[16:19], s47 offen lds")
        a("s_add_u32 m0, m0, 1024")
        a("s_nop 0")
        a("buffer_load_dwordx4 v42, s[16:19], s47 offen lds")
        nv += 2
    nq_ = nv
    if cfg.get("tw", 0) == 0:
        a("""
        v_lshrrev_b32 v26, 3, v0
        v_and_b32 v27, 7, v0
        v_lshlrev_b32 v27, 7, v27
        v_lshl_add_u32 v26, v26, 11, v27
        s_lshl_b32 s47, s31, 2
        s_add_u32 s47, s47, s3
        s_lshl_b32 s47, s47, 14
        s_lshr_b32 s50, s30, 2
        s_lshl_b32 s50, s50, 10
        s_add_u32 s47, s47, s50
        buffer_load_dword v27, v26, s[20:23], s47 offen
        """)
        nv += 1
    def residual(vw):
        a("s_setprio %d" % cfg.get("cprio3", 2))
        a("s_waitcnt lgkmcnt(0)")
        for rb in range(2):
            a("v_mul_f32 v%d, v%d, v%d" % (76 + 2 * rb, 76 + 2 * rb, 77 + 2 * rb))
            a("v_add_f32 v%d, 1.0, v%d" % (77 + 2 * rb, 77 + 2 * rb))
        a("s_waitcnt vmcnt(%d)" % vw)
        for g in range(4):
            rb = g // 2
            b = AC3 + 8 * g
            for i in range(4):
                a("v_lshlrev_b32 v%d, 16, v%d" % (b + 2 * i, XRL[g] + i))
                a("v_and_b32 v%d, 0xffff0000, v%d" % (b + 2 * i + 1, XRL[g] + i))
            for i in range(8):
                a("v_fma_f32 v%d, v%d, v%d, v%d" % (b + i, b + i, 77 + 2 * rb, 76 + 2 * rb))
        for g in range(4):
            for r in range(4):
                a("v_permlane16_swap_b32 v%d, v%d" % (AC3 + 8 * g + r, AC3 + 8 * g + 4 + r))
        a("s_setprio %d" % cfg.get("cprio2", 2))
        dg.t(6)
    WD = cfg.get("wd", 3); W0 = cfg.get("w0", 0)
    def wotile(k_):
        c, _, m, gr = wo[k_]
        cpwait(c)
        if k_ >= WD: a("s_waitcnt vmcnt(%d)" % (4 * (WD - 1)))
        if cfg.get("wgl", 0):
            lab = a.label("WG")
            a("ds_read_b32 v26, v27 offset:%d" % (M.F_KV - FL))
            a("s_waitcnt lgkmcnt(0)")
            a("v_cmp_eq_u32 vcc, 1, v26")
            a("s_cbranch_vccz %s" % lab)
            flag_wait(a, 26, 27, 2, sleep=1, off=M.F_KV - FL)
            a("%s:" % lab)
        if cfg.get("wlt", 0) and k_ >= W0:
            lab = a.label("WL")
            a("ds_read_b32 v26, v1 offset:%d" % (M.F_KV - FL))
            a("s_waitcnt lgkmcnt(0)")
            a("v_cmp_le_u32 vcc, 2, v26")
            a("s_cbranch_vccz %s" % lab)
            flag_wait(a, 26, 1, cfg["wlt"], sleep=1, off=M.F_OA - FL)
            a("%s:" % lab)
        a("s_add_u32 s47, s81, %d" % m)
        a("s_and_b32 s47, s47, 15")
        a("s_lshl_b32 s47, s47, 17")
        a("s_add_u32 m0, s79, %d" % (gr * G))
        a("s_add_u32 s47, s47, s57")
        for i in range(4):
            if i:
                a("s_add_u32 m0, m0, 1024")
                a("s_add_u32 s47, s47, 16384")
            a("buffer_load_dwordx4 v40, s[20:23], s47 offen lds")
    a("""
    s_lshl_b32 s57, s29, 7
    s_and_b32 s47, s3, 1
    s_lshl_b32 s79, s47, 12
    s_lshl_b32 s47, s47, 16
    s_add_u32 s57, s57, s47          ; rows 32*(w&1)
    """)
    WE = cfg.get("we", 0)
    if WE:
        assert XE == 1 and all(wo[k_][0] == 0 for k_ in range(WE)) and WE <= W0
        a("s_cmp_lt_u32 s3, 2")
        a("s_cbranch_scc1 F_we")
        for k_ in range(WE): wotile(k_)
        a("s_waitcnt vmcnt(%d)" % (nv + NAT + 4 * WE))
        a("s_branch F_wf")
        a("F_we:")
        a("s_waitcnt vmcnt(%d)" % (nv + NAT))
        a("F_wf:")
        residual(63)
    elif XE == 1: residual(nv + NAT)
    if W0:
        assert XE == 1 and not wq and W0 <= WD
        a("s_cmp_lt_u32 s3, 2")
        a("s_cbranch_scc1 F_w0")
        for k_ in range(WE, W0): wotile(k_)
        a("s_waitcnt vmcnt(%d)" % (nv + 4 * W0))
        a("s_branch F_w1")
        a("F_w0:")
    a("s_waitcnt vmcnt(%d)" % (nv + (0 if XE in (1, 3, 4) else 4)))
    a("F_w1:")
    s_signal(a, 82, 49, n=cfg.get("rk", 4))
    fset(3, 26, 3, off=M.F_KX - FL)
    dg.t(5)
    if wq:
        a("s_waitcnt vmcnt(%d)" % (nv - nq_))
        fset(3, 26, 1, off=M.F_LP - FL)
    if XE in (0, 3): residual(nv)
    a("s_cmp_ge_u32 s3, 2")
    a("s_cbranch_scc1 F_wo")
    flag_wait(a, 26, 18, 2, off=M.F_KX - FL)
    if P["kva"] != P["kx"]: cpwait(P["kva_at"])
    elif P["ms_at"]: flag_wait(a, 26, 1, 2, sleep=1, off=M.F_MF1 - FL)
    if GA:
        E = 28; GAC = 44; ZR = 60
        ring = [68 + 4 * k for k in range(8)] + [132 + 4 * k for k in range(8)]
        NR = len(ring)
        a("""
        v_lshlrev_b32 v9, 4, v0
        v_and_b32 v8, 0x30, v0           ; z voffset q*16
        v_lshrrev_b32 v4, 2, v8          ; 4q
        v_and_b32 v5, 15, v0
        v_sub_u32 v4, v5, v4             ; t = m - 4q
        v_and_b32 v5, 1, v4
        v_lshlrev_b32 v5, 4, v5
        v_mov_b32 v6, 0x3f80
        v_lshlrev_b32 v5, v5, v6
        v_lshrrev_b32 v4, 1, v4
        v_mov_b32 v28, 0
        v_mov_b32 v29, 0
        v_mov_b32 v32, 0
        v_mov_b32 v33, 0
        v_cmp_eq_u32 vcc, 0, v4
        v_cndmask_b32 v30, v28, v5, vcc
        v_cmp_eq_u32 vcc, 1, v4
        v_cndmask_b32 v31, v28, v5, vcc
        s_lshl_b32 s50, s44, 15
        """)
        s_poll(a, 54, 32, 58, sleep=cfg.get("ks", 1))
        dg.t(7)
        KSC = [" sc0 sc1", " sc1"][cfg.get("ksc", 1)]
        def gl(n):
            if n % 4 == 0 and n: a("s_add_u32 s50, s50, 4096")
            a("buffer_load_dwordx4 %s, v9, s[84:87], s50 offen offset:%d%s" % (q4(ring[n % NR]), (n % 4) * 1024, KSC))
        a("s_mov_b64 exec, 1")
        a("ds_write_b32 v3, v24 offset:%d" % (M.F_KV - FL))
        a("s_mov_b64 exec, -1")
        for db in range(2):
            a("buffer_load_dwordx4 %s, v8, s[24:27], s53 offen offset:%d%s" % (q4(ZR + 4 * db), db * 64, KSC))
        for n in range(NR): gl(n)
        for n in range(32):
            eb = n // 16
            a("s_waitcnt vmcnt(%d)" % (min(32, n + NR) - n - 1))
            for db in range(2):
                a(mfma16(GAC + 8 * eb + 4 * db, E + (2 if db == eb else 0), ring[n % NR], n % 16 == 0))
            if n + NR < 32: gl(n + NR)
            if n == 0:
                for x_ in pack_list(ZR, ZR, 8): a(x_)
                a("ds_write_b128 v13, %s" % q4(ZR))
            if n == 18:
                for x_ in pack_list(GAC, GAC, 8): a(x_)
                a("ds_write_b128 v12, %s" % q4(GAC))
        for x_ in pack_list(GAC + 8, GAC + 8, 8): a(x_)
        a("ds_write_b128 v12, %s offset:1024" % q4(GAC + 8))
    else:
        a("v_lshlrev_b32 v9, 4, v0")
        a("s_lshl_b32 s50, s3, 7")
        a("s_add_u32 s50, s50, %d" % M.ZX)
        a("s_add_u32 m0, s78, %d" % (P["kva"] * G))
        if cfg.get("pp1"): s_poll_pipe(a, 54, 32, 58, sleep=cfg["pp1"])
        else: s_poll(a, 54, 32, 58, sleep=cfg.get("ks", 1))
        dg.t(7)
        KSC = [" sc0 sc1", " sc1"][cfg.get("ksc", 1)]
        for t_ in range(2 * PKR if PKR else 4):
            if t_ == 2: a("s_add_u32 m0, m0, 2048")
            a("buffer_load_dwordx4 v9, s[24:27], s52 offen offset:%d%s lds" % (t_ * 1024, KSC))
        a("s_mov_b32 m0, s50")
        a("s_mov_b32 exec_hi, 0")
        a("buffer_load_dword v19, s[24:27], s53 offen%s lds" % KSC)
        a("s_mov_b64 exec, 1")
        if cfg.get("kdf", 0):
            a("s_lshl_b32 s50, s3, 2")
            a("s_add_u32 m0, s50, %d" % M.F_KV)
            a("s_add_u32 s51, s51, %d" % M.R_KV)
            a("buffer_load_dword v19, s[24:27], s51 offen sc1 lds")
        else:
            a("ds_write_b32 v3, v24 offset:%d" % (M.F_KV - FL))
        a("s_waitcnt vmcnt(0)")
    a("s_mov_b64 exec, 1")
    if not cfg.get("kdf", 0): a("ds_add_u32 v3, v24 offset:%d" % (M.F_KV - FL))
    else:
        a("v_mov_b32 v26, 32")
        a("ds_write_b32 v3, v26 offset:%d" % (M.F_KV - FL))
    a("s_mov_b64 exec, -1")
    dg.t(8)
    a("s_branch F_wj")
    a("F_wo:")
    if cfg.get("wgl", 0):
        a("s_waitcnt vmcnt(0)")
        a("v_and_b32 v27, 0xfffffff7, v1")
    if cfg.get("wg0"): flag_wait(a, 26, 1, cfg["wg0"], sleep=2, off=M.F_MW - FL)
    for k_ in range(W0, 16):
        if k_ == cfg.get("wgm", 99): flag_wait(a, 26, 1, 1, sleep=1, off=M.F_MF1 - FL)
        if k_ == cfg.get("wsp", 99): flag_wait(a, 26, 1, cfg.get("wsf", 1), sleep=1, off=M.F_OA - FL)
        wotile(k_)
    dg.t(7)
    a("F_wj:")
    if XE == 2: residual(0)
    if XE == 4: residual(63)
    a("v_mov_b32 v5, %d" % (M.F_SC + 8))
    flag_wait(a, 6, 5, 1, sleep=1)
    a("""
    v_and_b32 v5, 7, v0
    v_lshlrev_b32 v5, 2, v5
    v_add_u32 v5, %d, v5
    ds_read_b32 v5, v5
    s_lshr_b32 s47, s64, 5
    s_sub_u32 s47, 63, s47
    s_mov_b64 s[60:61], 0
    s_waitcnt lgkmcnt(0)
    v_bfe_u32 v5, v5, 5, 6
    v_cmp_eq_u32 vcc, s47, v5
    s_cbranch_vccz F_ns
    """ % M.SELL)
    a("v_mov_b32 v5, %d" % M.SELL)
    a("ds_read_b128 v[44:47], v5")
    a("ds_read_b128 v[48:51], v5 offset:16")
    a("v_and_b32 v6, 15, v0")
    a("v_add_u32 v6, s64, v6")
    a("v_sub_u32 v6, 2047, v6")
    a("v_subrev_u32 v7, 16, v6")
    a("v_mov_b32 v164, 0")
    a("v_mov_b32 v165, 0")
    a("s_waitcnt lgkmcnt(0)")
    for t in range(8):
        a("v_and_b32 v5, 0x7ff, v%d" % (44 + t))
        a("v_or_b32 v%d, 0x%x, v%d" % (44 + t, (t << 11) | 0x4000, 44 + t))
        a("v_cmp_eq_u32 vcc, v5, v6")
        a("v_cmp_eq_u32 s[62:63], v5, v7")
        a("v_cndmask_b32 v164, v164, v%d, vcc" % (44 + t))
        a("v_cndmask_b32 v165, v165, v%d, s[62:63]" % (44 + t))
    a("s_mov_b32 s47, 0x%x" % (LOG2E ^ 0x80000000))
    a("v_and_b32 v7, 0x30, v0")
    a("v_add_u32 v7, %d, v7" % M.YL)
    for rb in range(2):
        kreg = 164 + rb
        a("v_cmp_ne_u32 s[%d:%d], 0, v%d" % (74 + 2 * rb, 75 + 2 * rb, kreg))
        a("v_bfe_u32 v5, v%d, 11, 3" % kreg)
        a("v_lshl_add_u32 v%d, v5, 8, v7" % (162 + rb))
        a("v_and_b32 v5, 0xffff0000, v%d" % kreg)
        a("v_ashrrev_i32 v6, 31, v5")
        a("v_not_b32 v6, v6")
        a("v_or_b32 v6, 0x80000000, v6")
        a("v_xor_b32 v5, v5, v6")
        a("v_and_b32 v5, 0xffff0000, v5")
        a("v_mul_f32 v5, s47, v5")
        a("v_exp_f32 v5, v5")
        a("v_add_f32 v5, 1.0, v5")
        a("v_rcp_f32 v5, v5")
        a("v_cvt_pk_bf16_f32 v5, v5, v5")
        a("v_lshlrev_b32 v%d, 16, v5" % kreg)
    if cfg.get("yst", 1): a("v_add_u32 v161, %d, v3" % (M.F_LP - FL))
    else: a("v_mov_b32 v161, %d" % M.F_Y)
    a("s_mov_b64 s[60:61], 1")
    a("F_ns:")
    dg.t(9)
    a("; @@PRI:l:4:DENS@@")
    a("""
    s_lshl_b32 s51, s28, 2
    s_add_u32 s51, s51, s3
    s_lshl_b32 s51, s51, 3
    s_and_b32 s47, s29, %d
    s_add_u32 s51, s51, s47
    s_lshl_b32 s51, s51, 7
    """ % (cfg.get("ro", 4) - 1))
    s_addr(a, 54, 51, M.KV_OFF + M.R_O)
    a("""
    v_lshlrev_b32 v98, 4, v0         ; lane*16
    v_lshrrev_b32 v16, 4, v0         ; q
    v_bfe_u32 v17, v0, 2, 2
    v_lshl_add_u32 v17, v16, 2, v17  ; row = 4q + r
    v_bfe_u32 v16, v17, 1, 2         ; f(row)
    v_lshlrev_b32 v16, 5, v16
    v_lshl_add_u32 v16, v17, 7, v16
    v_and_b32 v17, 3, v0
    v_lshl_add_u32 v4, v17, 3, v16
    v_xor_b32 v5, 32, v4
    v_xor_b32 v6, 64, v4
    v_xor_b32 v7, 96, v4
    s_lshl_b32 s79, s28, 18
    s_lshl_b32 s80, s3, 16
    s_add_u32 s79, s79, s80
    s_lshl_b32 s81, s81, 11          ; rotation in bytes
    v_mov_b32 v99, 1
    """)
    TH = cfg.get("th", 0)
    W3 = (0, 57344, 114688)
    for w in range(1, 3 if not TH else 0):
        for nb in range(4):
            a("v_add_u32 v%d, %d, v%d" % (4 + 4 * w + nb, W3[w], 4 + nb))
    a.srd(16, 72, 4 * MB, M.O_OFF)
    a.srd(12, 68, 2048 * 2048)
    OB3 = 16
    DP = cfg.get("dp", 6)
    obufs = [48 + 8 * k for k in range(6)] + [132 + 8 * k for k in range(3)]
    NOB = DP + 1
    assert NOB <= len(obufs)
    def b3reads(st):
        if TH:
            return ["ds_read_b64_tr_b16 %s, v%d offset:%d" % (pr(OB3 + 16 * (st & 1) + 4 * nb + 2 * h), 8 + 4 * ((st // 2) & 1) + nb, (st & 1) * 4096 + h * 2048) for nb in range(4) for h in range(2)]
        base = P["wo"][st // 2] * G
        w = max(k for k in range(3) if W3[k] <= base)
        return ["ds_read_b64_tr_b16 %s, v%d offset:%d" % (pr(OB3 + 16 * (st & 1) + 4 * nb + 2 * h), 4 + 4 * w + nb, base - W3[w] + (st & 1) * 4096 + h * 2048) for nb in range(4) for h in range(2)]
    OSC = ["", " sc1", " sc0 sc1"][cfg.get("osc", 1)]
    SO = [4, 5, 6, 7, 8, 9, 10, 11, 30, 31, 32, 33, 34, 35, 36, 37]
    LB = [38, 39, 44, 45, 46, 48, 49, 52, 53, 56, 57, 58, 59, 62, 63, 65]
    if TH:
        assert not wq
        lo = sum(P["wo"][m] << (8 * m) for m in range(8)); hi = sum(P["wo"][8 + m] << (8 * m) for m in range(8))
        a("""
        v_and_b32 v16, 15, v0
        v_lshlrev_b32 v96, 11, v16
        v_subrev_u32 v17, s81, v96
        v_add_u32 v96, s79, v96
        v_bfe_u32 v17, v17, 11, 4        ; slot m = (t - rot) & 15
        v_mov_b32 v18, 0x%x
        v_mov_b32 v19, 0x%x
        v_mov_b32 v20, 0x%x
        v_mov_b32 v21, 0x%x
        v_cmp_lt_u32 vcc, 7, v17
        v_cndmask_b32 v18, v18, v20, vcc
        v_cndmask_b32 v19, v19, v21, vcc
        v_and_b32 v20, 4, v17
        v_cmp_ne_u32 vcc, 0, v20
        v_cndmask_b32 v18, v18, v19, vcc
        v_and_b32 v17, 3, v17
        v_lshlrev_b32 v17, 3, v17
        v_bfe_u32 v18, v18, v17, 8
        v_lshlrev_b32 v47, 13, v18
        """ % (lo & 0xffffffff, lo >> 32, hi & 0xffffffff, hi >> 32))
    for m in range(16 if not TH else 0):
        a("s_add_u32 s80, s81, %d" % (m * 2048))
        a("s_and_b32 s80, s80, 0x7fff")
        a("s_add_u32 s%d, s80, s79" % SO[m])
        if XB & 8 and m == 0: a("s_mov_b32 s%d, 0x7ff00000" % SO[m])
    a("v_add_u32 v97, 0x8000, v98")
    def oload(st):
        b = obufs[st % NOB]
        return ["buffer_load_dwordx4 %s, v%d, s[16:19], s%d offen offset:%d%s" % (q4(b + 4 * rb), 98 - rb, SO[st // 2], (st % 2) * 1024, OSC) for rb in range(2)]
    def wset():
        a("s_mov_b64 exec, 1")
        a("ds_write_b32 v3, v99 offset:%d" % (M.F_WO - FL))
        a("s_mov_b64 exec, -1")
    a("s_setprio %d" % cfg.get("cprio4", 2))
    dg.t(10)
    if cfg.get("og"): flag_wait(a, 16, 3, cfg["og"], sleep=1, off=M.F_OA - FL)
    if cfg.get("pp2"):
        assert not TH
        a("s_mov_b32 s50, 0")
        def inner():
            a("s_getreg_b32 s51, hwreg(HW_REG_IB_STS)")
            a("s_and_b32 s51, s51, 0xc0000f")
            a("s_or_b32 s51, s51, s50")
            a("s_cbranch_scc1 F_oq")
            wset()
            a("s_mov_b32 s50, 1")
            a("F_oq:")
        s_poll_pipe(a, 54, 16, 47, sleep=cfg["pp2"], inner=inner)
    else:
        a("s_mov_b32 s50, 0")
        a("F_op:")
        spin_guard(a)
        a("s_load_dword s47, s[54:55], 0 glc")
        a("s_getreg_b32 s51, hwreg(HW_REG_IB_STS)")
        a("s_and_b32 s51, s51, 0xc0000f")
        a("s_or_b32 s51, s51, s50")
        a("s_cbranch_scc1 F_oq")
        wset()
        a("s_mov_b32 s50, 1")
        a("F_oq:")
        a("s_waitcnt lgkmcnt(0)")
        if TH:
            a("s_bcnt1_i32_b32 s51, s47")
            a("s_cmp_lt_u32 s51, %d" % TH)
        else:
            a("s_cmp_lt_u32 s47, %d" % cfg.get("otgt", 16))
        if cfg.get("os"):
            a("s_cbranch_scc0 F_ox")
            a("s_sleep %d" % cfg["os"])
            a("s_branch F_op")
            a("F_ox:")
        else:
            a("s_cbranch_scc1 F_op")
    dg.t(11)
    if cfg.get("xsl2"): a("s_sleep %d" % cfg["xsl2"])
    def pick(p):
        a("s_ff1_i32_b32 s51, s47")
        a("s_bitset0_b32 s47, s51")
        a("v_readlane_b32 s%d, v96, s51" % SO[p])
        a("v_readlane_b32 s%d, v47, s51" % LB[p])
    if TH:
        assert DP <= 2 * TH
        a("s_not_b32 s51, s47")
        a("s_lshl_b32 s51, s51, 16")
        a("s_or_b32 s47, s47, s51")
        for p in range((DP + 1) // 2): pick(p)
    for st in range(DP):
        for x_ in oload(st): a(x_)
    if TH:
        for p in range((DP + 1) // 2, 16): pick(p)
        for nb in range(4): a("v_add_u32 v%d, s%d, v%d" % (8 + nb, LB[0], 4 + nb))
    a("s_cmp_lg_u32 s50, 0")
    a("s_cbranch_scc1 F_or")
    a("s_waitcnt vmcnt(%d)" % (2 * DP))
    wset()
    a("F_or:")
    if cfg.get("yg") == 1:
        a("s_mov_b64 exec, 1")
        a("ds_write_b32 v3, v99 offset:%d" % (M.F_P3 - FL))
        a("s_mov_b64 exec, -1")
    a("v_or_b32 v17, 8, v1")
    flag_wait(a, 16, 17, 1, off=M.F_WO - FL)
    if cfg.get("fl", 0):
        a("v_and_b32 v1, 0x3fff, v2")
        a("v_bfe_u32 v99, v0, 3, 1")
        a("v_lshl_add_u32 v1, v99, 6, v1")
    S = LgkmStream(a)
    for r in b3reads(0): S.emit(r)
    def acc3(rb, nb): return AC3 + (rb * 4 + nb) * 4
    P3M = cfg.get("p3m", 1)
    LK = (cfg.get("lk0", 5), cfg.get("lk1", 7)) if P3M else (2, 5)
    for st in range(32):
        rq = b3reads(st + 1) if st + 1 < 32 else []
        lq = oload(st + DP) if st + DP < 32 else []
        outst = min(32, st + DP) - st - 1
        if P3M:
            a("s_waitcnt vmcnt(%d) lgkmcnt(0)" % (2 * outst)); S.pend = []
        else:
            a("s_waitcnt vmcnt(%d)" % (2 * outst))
        if st == 0: dg.t(12, S)
        if TH and st + DP == 2 * TH:
            lab = a.label("AR")
            if st:
                a("v_cmp_eq_u32 vcc, 0, v96")
                a("s_cbranch_vccz %s" % lab)
            flag_wait(a, 96, 3, 1, off=M.F_LP - FL)
            a("%s:" % lab)
            dg.t(13, S)
        if st == 31:
            yb = [b_ + 4 * h_ for b_ in obufs[:NOB] if b_ != obufs[31 % NOB] for h_ in range(2)][:8]
            def yreads():
                a("ds_read_b32 v160, v161")
                for rb in range(2):
                    for nb in range(4): a("ds_read_b128 %s, v%d offset:%d" % (q4(yb[rb * 4 + nb]), 162 + rb, nb * 64))
            a("s_cmp_eq_u64 s[60:61], 0")
            a("s_cbranch_scc1 F_y0")
            yreads()
            a("F_y0:")
        if TH and st + DP + 1 == 2 * TH: rq.append("ds_read_b32 v96, v3 offset:%d" % (M.F_LP - FL))
        vq = ["v_add_u32 v%d, s%d, v%d" % (8 + 4 * ((st // 2 + 1) & 1) + nb, LB[st // 2 + 1], 4 + nb) for nb in range(4)] if (TH and st % 2 == 0 and st + 2 < 32) else []
        k = 0
        for (nb, rb) in ([(n_, r_) for n_ in range(4) for r_ in range(2)] if st < 31 else [(n_, r_) for r_ in range(2) for n_ in range(4)]):
            if True:
                S.emit(mfma16(acc3(rb, nb), OB3 + 16 * (st & 1) + 4 * nb, obufs[st % NOB] + 4 * rb, False))
                k += 1
                for _ in range(2 if P3M else 1):
                    if rq: S.emit(rq.pop(0))
                for kk in LK:
                    if k == kk and lq: a(lq.pop(0))
                if k > 4 and vq: a(vq.pop(0))
        assert not rq and not lq
        if cfg.get("diag2") == 3 and st % 2 == 1: dc.t(st // 2, S)
    dg.t(14, S)
    a("s_cmp_eq_u64 s[60:61], 0")
    a("s_cbranch_scc1 F_fin")
    a("F_y1:")
    spin_guard(a)
    a("s_waitcnt lgkmcnt(0)")
    a("v_cmp_eq_u32 vcc, 0, v160")
    a("s_cbranch_vccz F_y2")
    yreads()
    a("s_branch F_y1")
    a("F_y2:")
    a("s_nop 4")
    for rb in range(2):
        lab = a.label("F_rb")
        a("s_mov_b64 exec, s[%d:%d]" % (74 + 2 * rb, 75 + 2 * rb))
        a("s_cbranch_execz %s" % lab)
        for nb in range(4):
            for r in range(4): a("v_fmac_f32 v%d, v%d, v%d" % (acc3(rb, nb) + r, yb[rb * 4 + nb] + r, 164 + rb))
        a("%s:" % lab)
    a("s_mov_b64 exec, -1")
    a("F_fin:")
    if cfg.get("xsl"): a("s_sleep %d" % cfg["xsl"])
    if XB & 128: a("s_mov_b32 s14, 0")
    OS = ["", " sc1", " sc0 sc1", " nt", " sc1 nt"][cfg.get("ost", 1)]
    FLN = cfg.get("fl", 0)
    for g in range(4):
        rb, m = g // 2, g % 2
        for x_ in pack_list(16 + 4 * g, AC3 + 8 * g, 8): a(x_)
        if m == 1 or not FLN:
            for g_ in ([g] if not FLN else [g - 1, g]):
                for r in range(2): a("v_permlane16_swap_b32 v%d, v%d" % (16 + 4 * g_ + r, 18 + 4 * g_ + r))
        if not FLN:
            a("buffer_store_dwordx4 %s, v2, s[12:15], s%d offen offset:%d%s" % (q4(16 + 4 * g), 42 + rb, m * 64, OS))
        elif m == 1:
            Pq, Qq = 16 + 8 * rb, 20 + 8 * rb
            for i in range(4): a("v_mov_b32 v%d, v%d" % (4 + i, Pq + i))
            for i in range(4): a("v_mov_b32_dpp v%d, v%d row_ror:8 row_mask:0xf bank_mask:0xc" % (Pq + i, Qq + i))
            for i in range(4): a("v_mov_b32_dpp v%d, v%d row_ror:8 row_mask:0xf bank_mask:0x3" % (Qq + i, 4 + i))
            a("s_add_u32 s44, s%d, 0x4000" % (42 + rb))
            a("buffer_store_dwordx4 %s, v1, s[12:15], s%d offen%s" % (q4(Pq), 42 + rb, OS))
            a("buffer_store_dwordx4 %s, v1, s[12:15], s44 offen%s" % (q4(Qq), OS))
    dg.t(15)
    if cfg.get("padto"):
        if cfg.get("padx") is not None:
            a("s_and_b32 s92, s2, %d" % cfg.get("padm", 7))
            a("s_cmp_lg_u32 s92, %d" % cfg["padx"])
            a("s_cbranch_scc1 F_end")
        a("s_add_u32 s96, s96, %d" % cfg["padto"])
        if cfg.get("mark") is not None:
            a("s_mul_i32 s95, s95, %d" % cfg.get("amp", 1))
            a("s_add_u32 s96, s96, s95")
        a("F_pad:")
        a("s_memrealtime s[92:93]")
        a("s_waitcnt lgkmcnt(0)")
        a("s_sub_u32 s92, s96, s92")
        a("s_cmp_gt_i32 s92, 0")
        a("s_cbranch_scc1 F_pad")
    if dg.on:
        if not dc.on:
            a('s_cmp_lg_u32 s3, 2')
            a('s_cbranch_scc1 F_dz')
            dg.out(3)
            a("F_dz:")
        a('s_cmp_lg_u32 s3, 0')
        a('s_cbranch_scc1 F_end')
        dg.out(0)
        if cfg.get("diag2") not in (2, 6): dc.out(3)
    a("s_endpgm")
    dg.mark = None
```

```python
import re

TRANS = ("v_exp_f32", "v_log_f32", "v_rcp_f32", "v_rsq_f32", "v_sqrt_f32", "v_sin_f32", "v_cos_f32", "v_rcp_iflag_f32",
         "v_exp_f16", "v_log_f16", "v_rcp_f16", "v_rsq_f16", "v_sqrt_f16")

def regs_of(tok):
    tok = tok.strip()
    tok = re.sub(r"^-", "", tok)
    m = re.match(r"^(?:abs|neg)\((.*)\)$", tok)
    if m: tok = m.group(1)
    tok = tok.strip("|")
    m = re.match(r"^([vsa])(\d+)$", tok)
    if m: return {m.group(1) + m.group(2)}
    m = re.match(r"^([vsa])\[(\d+):(\d+)\]$", tok)
    if m: return {m.group(1) + str(i) for i in range(int(m.group(2)), int(m.group(3)) + 1)}
    if tok in ("vcc", "vcc_lo", "vcc_hi"): return {"vcc"}
    if tok in ("exec", "exec_lo", "exec_hi"): return {"exec"}
    if tok == "m0": return {"m0"}
    return set()

def split_ops(s):
    out, depth, cur = [], 0, ""
    for ch in s:
        if ch in "[(": depth += 1
        if ch in "])": depth -= 1
        if ch == "," and depth == 0:
            out.append(cur); cur = ""
        else:
            cur += ch
    out.append(cur)
    return [o.strip() for o in out if o.strip()]

class Ins:
    def __init__(self, text):
        self.text = text
        t = text.split(";")[0].strip()
        self.is_label = t.endswith(":")
        self.is_dir = t.startswith(".")
        self.empty = (t == "")
        self.op = ""
        self.w = set(); self.r = set()
        self.kind = "other"
        self.states = 1
        if self.is_label or self.is_dir or self.empty:
            self.states = 0
            return
        parts = t.split(None, 1)
        op = parts[0]; self.op = op
        rest = parts[1] if len(parts) > 1 else ""
        ops = split_ops(rest)
        mods = ""
        if ops:
            last = ops[-1].split(None, 1)
            ops[-1] = last[0]
            mods = last[1] if len(last) > 1 else ""
        self.mods = mods
        self.ops = ops
        R = [regs_of(o) for o in ops]
        base = re.sub(r"_(e32|e64|dpp|sdwa)$", "", op)
        self.base = base
        if op == "s_nop":
            self.states = int(ops[0], 0) + 1
            self.kind = "nop"
        elif op.startswith("v_mfma") or op.startswith("v_smfmac"):
            self.kind = "mfma"
            self.w = R[0]; self.a = R[1]; self.b = R[2]; self.c = R[3]
            self.r = R[1] | R[2] | R[3]
            self.passes = 8 if "32x32" in op else 4
            if "_f32_32x32x2_f32" in op: self.passes = 16
            if "_f32_16x16x4_f32" in op: self.passes = 8
        elif op.startswith("v_"):
            self.kind = "valu"
            nd = 1
            if base in ("v_add_co_u32", "v_sub_co_u32", "v_subrev_co_u32", "v_addc_co_u32", "v_subb_co_u32", "v_subbrev_co_u32", "v_div_scale_f32", "v_mad_u64_u32"):
                nd = 2
            for x in R[:nd]: self.w |= x
            for x in R[nd:]: self.r |= x
            if base.startswith("v_cmpx"): self.w |= {"exec"}
            if base in ("v_fmac_f32", "v_pk_fmac_f16", "v_dot2c_f32_bf16", "v_fmac_f16", "v_writelane_b32") or "swap" in base:
                self.r |= R[0]
            if "swap" in base:
                self.w |= R[1]
            if base == "v_cndmask_b32" and len(ops) == 3: self.r |= {"vcc"}
            if base == "v_div_fmas_f32": self.r |= {"vcc"}
            self.dpp = ("row_" in mods or "quad_perm" in mods or "wave_" in mods or op.endswith("_dpp"))
            if self.dpp: self.r |= R[0]
            self.trans = base in TRANS
        elif op.startswith("buffer_") or op.startswith("global_") or op.startswith("flat_"):
            self.kind = "vmem"
            allr = set()
            for x in R: allr |= x
            self.lds = bool(re.search(r"\blds\b", mods)) or "_lds_" in op
            if "load" in op and not self.lds:
                self.w = R[0]
                for x in R[1:]: self.r |= x
            elif "atomic" in op:
                self.r = allr
                if "sc0" in mods: self.w = R[0]
            else:
                self.r = allr
            if self.lds: self.r |= {"m0"}
            self.wide_store = ("store" in op and ("x3" in op or "x4" in op))
            if self.wide_store:
                self.data = R[0] if op.startswith("buffer_") else R[1]
        elif op.startswith("ds_"):
            self.kind = "ds"
            if op.startswith("ds_read") or "permute" in op or "swizzle" in op or "_rtn" in op:
                self.w = R[0]
                for x in R[1:]: self.r |= x
            else:
                for x in R: self.r |= x
        elif op.startswith("s_"):
            self.kind = "salu"
            if op.startswith("s_cmp") or op.startswith("s_cbranch") or op in ("s_branch", "s_waitcnt", "s_barrier", "s_endpgm", "s_setprio", "s_sleep", "s_bitcmp0_b32", "s_bitcmp1_b32"):
                for x in R: self.r |= x
            else:
                if R:
                    self.w = R[0]
                    for x in R[1:]: self.r |= x
                if "saveexec" in op: self.w |= {"exec"}

def need(p, c):
    n = 0
    isv = lambda s: {x for x in s if x[0] in "va" and x not in ("vcc",)}
    iss = lambda s: {x for x in s if x[0] == "s" or x == "vcc"}
    if p.kind == "valu":
        pw_v = isv(p.w); pw_s = iss(p.w)
        if c.kind == "mfma" and pw_v & c.r: n = max(n, 2)
        if c.kind == "mfma" and "exec" in p.w: n = max(n, 4)
        if c.kind == "valu":
            if p.trans and (pw_v & c.r) and not c.trans: n = max(n, 1)
            if p.trans and (pw_v & c.r): n = max(n, 1)
            if c.dpp and pw_v & c.r: n = max(n, 2)
            if c.dpp and "exec" in p.w: n = max(n, 5)
            if c.base in ("v_readlane_b32", "v_readfirstlane_b32") and pw_v & c.r: n = max(n, 1)
            if "permlane" in c.base and pw_v & (c.r | c.w): n = max(n, 2)
            if pw_s & c.r:
                n = max(n, 2)
                if c.base in ("v_readlane_b32", "v_writelane_b32"): n = max(n, 4)
                if c.base == "v_div_fmas_f32": n = max(n, 4)
            if "exec" in p.w:
                if c.base in ("v_readlane_b32", "v_readfirstlane_b32", "v_writelane_b32") or "permlane" in c.base: n = max(n, 4)
                elif "exec" in c.r: n = max(n, 2)
        if c.kind == "vmem" and pw_s & c.r: n = max(n, 5)
        if c.kind == "salu" and pw_s & c.r: n = max(n, 1)
    if p.kind == "mfma":
        big = {4: 8, 8: 12, 16: 20}[p.passes]
        if c.kind == "mfma":
            if p.w & (c.a | c.b): n = max(n, big)
            if p.w & c.c:
                if not (p.w == c.c and p.passes == c.passes): n = max(n, big - 2)
            if (p.w & c.w) and not (p.w == c.c): n = max(n, big - 2)
        elif c.kind in ("valu", "vmem", "ds"):
            if p.w & (c.r | c.w): n = max(n, big)
            if c.kind == "valu" and (p.c & c.w): n = max(n, {4: 3, 8: 7, 16: 15}[p.passes])
    if p.kind == "salu":
        if "m0" in p.w and c.kind == "vmem" and c.lds: n = max(n, 1)
    if p.kind == "vmem" and getattr(p, "wide_store", False):
        if p.data & c.w: n = max(n, 2)
    return n

def pad(lines, verbose=False):
    out = []
    hist = []
    npad = 0
    lg = 0; vm = 0
    for text in lines:
        ins = Ins(text)
        if ins.states == 0:
            out.append(text)
            continue
        if ins.op == "s_waitcnt":
            m = re.search(r"lgkmcnt\((\d+)\)", text)
            if m: lg = min(lg, int(m.group(1)))
            m = re.search(r"vmcnt\((\d+)\)", text)
            if m: vm = min(vm, int(m.group(1)))
        inc = 0
        if ins.kind == "ds": inc = 1
        elif ins.op in ("s_load_dword", "s_atomic_add", "s_atomic_or"): inc = 1
        elif ins.op.startswith("s_load") or ins.op.startswith("s_atomic") or ins.op.startswith("s_mem") or ins.op.startswith("s_buffer"): inc = 2
        if inc and lg + inc > 15:
            out.append("    s_waitcnt lgkmcnt(8)")
            hist.append(Ins("s_waitcnt lgkmcnt(8)"))
            lg = 8
            pass
        lg += inc
        if ins.kind == "vmem":
            vm += 1
            if vm > 63 and verbose: print("WARNING vmcnt overflow at", text.strip())
        if ins.op in ("s_endpgm", "s_branch"): lg = 0; vm = 0
        dist = 0
        req = 0
        for p in reversed(hist):
            k = need(p, ins) - dist
            if k > req: req = k
            dist += p.states
            if dist > 24: break
        while req > 0:
            k = min(req, 16)
            nop = Ins("s_nop %d" % (k - 1))
            out.append("    s_nop %d" % (k - 1))
            hist.append(nop)
            req -= k
            npad += 1
        out.append(text)
        hist.append(ins)
        if ins.op in ("s_endpgm", "s_branch"):
            hist = []
        if len(hist) > 40: hist = hist[-40:]
    if verbose: print("hazard pads inserted:", npad)
    return out
```

```python
from common import *
import alloc4

O_OFF = 4 * MB
KV_OFF = 8 * MB
KV_BYTES = 32 * 4224
Y_REL = KV_BYTES
C_Y = KV_BYTES + 32768
C_PRE = C_Y
R_KV = 256 * 720
R_O = R_KV + 32768
R_Y = R_O + 65536
ZPER = 1152
ZB = 256 * ZPER
KEY_OFF = 8 * MB + 320 * 1024
ST_REL = 8192
CX_REL = 32768
PRE_OFF = 9 * MB
PRE_BYTES = 4 * 2 * 8 * 3584 * 4
CS_OFF = 8 * MB + 384 * 1024
KVP_OFF = 10 * MB
YP_OFF = 11 * MB
GO = 1000
SCR = 19 * G
NML, RSL, RLL, NM3, RS3 = SCR, SCR + 512, SCR + 1024, SCR + 1536, SCR + 2048
CL = SCR + 2560
SELL = SCR + 3328
FLG = SCR + 3392
F_CP, F_LP, F_KX, F_SC, F_MF1, F_MF2, F_Y, F_LQ, F_KV, F_OA, F_WO, F_MW = [FLG + 16 * k for k in range(12)]
F_P3 = F_MW
ZX = SCR + 3584
YL = SCR + 4096
WRL = SCR + 6144


def gen(a, cfg):
    name = NAME + "_kernel"
    DR = [int(ch) for ch in "%016d" % cfg.get("dr", 122111111100000)]
    P = alloc4.allocate(DR, cfg.get("R", 4), nxe=cfg.get("nxe", 4), MSC=cfg.get("msc", 6), NQ0=cfg.get("nq0", 99), SS=cfg.get("ss", 2), SF=cfg.get("ss", 2) + 1, KVA=cfg.get("kva", 1), verbose=cfg.get("v", 0))
    AL = P["res"]; QO = P["qorder"]; NST = len(QO)
    LAT = True
    KT, CST = latin_tables(cfg.get("kd0", 1), cfg.get("dl", 1), cfg.get("lor", 0))
    if cfg.get("v"): print(KT)
    MS = (P["ms"][0] * G, P["ms"][1] * G)
    KX = P["kx"] * G
    NT = " nt" if cfg.get("nt", 1) else ""
    a.launch(name, 256, 768, 163840)
    a.begin_kernel(name)
    a.safe = "F_end" if cfg.get("safe") else None
    dg = Diag(a, cfg.get("diag", 0), 166)
    dc = Diag(a, cfg.get("diag2", 0), 167, cyc=cfg.get("cyc", 0))

    def fset(vaddr, vtmp, val, off=0, S=None):
        a("v_mov_b32 v%d, %d" % (vtmp, val))
        a("s_mov_b64 exec, 1")
        (S.emit if S else a)("ds_write_b32 v%d, v%d offset:%d" % (vaddr, vtmp, off))
        a("s_mov_b64 exec, -1")

    if dg.on or cfg.get("padto"): a("s_memrealtime s[96:97]")
    a("""
    s_load_dwordx4 s[4:7], s[0:1], 0
    s_load_dwordx2 s[8:9], s[0:1], 16
    s_load_dwordx8 s[60:67], s[0:1], 32
    s_load_dwordx4 s[68:71], s[0:1], 64
    s_load_dwordx2 s[72:73], s[0:1], 80
    s_cmp_ge_u32 s2, 256
    s_cbranch_scc1 F_end
    v_lshrrev_b32 v1, 6, v0
    v_and_b32 v0, 63, v0
    s_and_b32 s30, s2, 7         ; xcd
    v_readfirstlane_b32 s3, v1
    s_lshr_b32 s31, s2, 3
    s_and_b32 s36, s30, 1        ; half
    s_lshl_b32 s32, s36, 3
    s_and_b32 s35, s31, 7        ; ri
    s_add_u32 s32, s32, s35      ; i
    s_lshr_b32 s37, s30, 1       ; g
    s_lshl_b32 s33, s37, 2
    s_lshr_b32 s34, s31, 3       ; cj
    s_add_u32 s33, s33, s34      ; j
    s_add_u32 s10, s33, %d
    s_and_b32 s10, s10, 15       ; jq
    s_add_u32 s11, s35, s34
    s_and_b32 s11, s11, 3        ; class
    s_and_b32 s28, s32, 11
    s_and_b32 s29, s37, 1
    s_lshl_b32 s29, s29, 2
    s_add_u32 s28, s28, s29      ; i3 = 8*half + 4*(g&1) + (ri&3)
    s_lshr_b32 s29, s37, 1
    s_lshl_b32 s29, s29, 3
    s_and_b32 s38, s35, 4
    s_add_u32 s29, s29, s38
    s_add_u32 s38, s34, J3R
    s_and_b32 s38, s38, 3
    s_add_u32 s29, s29, s38      ; j3 = 8*(g>>1) + 4*(ri>>2) + ((cj+r)&3)
    """.replace("J3R", str(cfg.get("j3r", 1))) % cfg.get("qrot", 4))
    if cfg.get("map3"):
        a("s_mov_b32 s28, s32")
        a("s_and_b32 s29, s33, 12")
        a("s_add_u32 s29, s29, s38")
    if LAT:
        a("s_lshl_b32 s11, s34, 1")
        a("s_add_u32 s11, s11, s35")
        a("s_and_b32 s11, s11, 7")
    if a.safe: a("s_mov_b32 s90, 0x8000")
    if cfg.get("dly") is not None:
        a("s_cmp_lg_u32 s2, %d" % cfg["dly"])
        a("s_cbranch_scc1 F_dly")
        for _ in range(cfg.get("dlt", 4)): a("s_sleep 127")
        a("F_dly:")
    a("""
    s_mul_i32 s89, s36, %d
    s_mul_i32 s38, s37, %d
    s_add_u32 s89, s89, s38      ; kblock start
    """ % (8, cfg.get("kb", 2)))
    for c in range(len(KT)):
        lo = sum(KT[c][g] << (4 * g) for g in range(8)); hi = sum(KT[c][8 + g] << (4 * g) for g in range(8))
        if c: a("s_cmp_eq_u32 s11, %d" % c)
        a(("s_cselect_b32 s94, 0x%x, s94" if c else "s_mov_b32 s94, 0x%x") % lo)
        a(("s_cselect_b32 s95, 0x%x, s95" if c else "s_mov_b32 s95, 0x%x") % hi)
    a("s_cmp_ge_u32 s3, 8")
    a("s_cbranch_scc1 F_aux")
    a("s_cmp_ge_u32 s3, 4")
    a("s_cbranch_scc1 F_nl")
    a("""
    v_lshrrev_b32 v2, 3, v0          ; r
    v_and_b32 v3, 7, v0              ; c
    v_lshrrev_b32 v4, 1, v2          ; r>>1
    v_xor_b32 v5, v3, v4
    v_xor_b32 v6, 4, v5
    v_lshlrev_b32 v5, 4, v5
    v_lshlrev_b32 v6, 4, v6
    v_lshlrev_b32 v7, 11, v2
    v_add_u32 v5, v5, v7             ; A even instr
    v_add_u32 v6, v6, v7             ; A odd instr
    v_and_b32 v4, 1, v4
    v_lshlrev_b32 v4, 1, v4
    v_xor_b32 v8, v3, v4
    v_xor_b32 v9, 4, v8
    v_lshlrev_b32 v8, 4, v8
    v_lshlrev_b32 v9, 4, v9
    v_mul_u32_u24 v7, 6144, v2
    v_add_u32 v8, v8, v7             ; B first
    v_add_u32 v9, v9, v7
    v_add_u32 v9, 49152, v9          ; B second
    s_lshl_b32 s36, s32, 18
    s_lshl_b32 s37, s3, 16
    s_add_u32 s36, s36, s37          ; A soffset base (rows tile*128 + 32w)
    s_lshl_b32 s38, s33, 7           ; j*128
    s_mul_i32 s37, s3, %d
    s_add_u32 s38, s38, s37          ; B base: rows 16w..
    s_lshl_b32 s47, s10, 7
    s_add_u32 s47, s47, s37          ; B base for q
    s_lshl_b32 s44, s3, 12           ; lds base A per wave
    s_lshl_b32 s45, s3, 11           ; lds base B per wave
    s_add_u32 s43, s45, 1024
    s_mov_b32 s14, %d
    s_mov_b32 s15, 0x20000
    s_mov_b32 s18, %d
    s_mov_b32 s19, 0x20000
    s_waitcnt lgkmcnt(0)
    s_mov_b32 s12, s4
    s_mov_b32 s13, s5
    s_mov_b32 s16, s6
    s_mov_b32 s17, s7
    """ % (16 * 6144, 2048 * 2048, 1024 * 6144))
    cur = [None]
    def kb(g):
        if cur[0] != g:
            a("s_bfe_u32 s40, s%d, 0x%x" % (94 + g // 8, (4 << 16) | (4 * (g % 8))))
            a("s_add_u32 s40, s89, s40")
            a("s_and_b32 s40, s40, 15")
            a("s_mul_i32 s41, s40, %d" % (64 * 6144))
            a("s_lshl_b32 s40, s40, 7")
            a("s_add_u32 s40, s40, s36")
            a("s_add_u32 s42, s41, s47")
            a("s_add_u32 s41, s41, s38")
            cur[0] = g
    def dma(kind, g, i, gr):
        base = gr * G
        if kind == "S":
            if g == 0 and i == 0:
                a("s_lshl_b32 s51, s32, 4")
                a("s_add_u32 s51, s51, s33")
                a("s_lshl_b32 s51, s51, 14")
                a("s_add_u32 s51, s51, s45")
                if cfg.get("xb", 0) & 16: a("s_mov_b32 s51, 0x7ff00000")
                a("v_lshlrev_b32 v165, 4, v0")
                a.srd(20, 60, 2048)
            if i == 2:
                a("s_and_b32 s46, s3, 1")
                a("s_lshl_b32 s46, s46, 10")
                a("s_add_u32 m0, s46, %d" % WRL)
                a("s_nop 0")
                a("buffer_load_dwordx4 v165, s[20:23], s46 offen lds")
                return
            a("s_add_u32 m0, s45, %d" % (base + i * 1024))
            a("s_add_u32 s46, s51, %d" % (g * 8192 + i * 1024))
            a("buffer_load_dwordx4 v165, s[12:15], s46 offen lds")
            return
        kb(g)
        if kind == "X":
            a("s_add_u32 m0, s44, %d" % (base + i * 1024))
            a("s_add_u32 s46, s40, %d" % (i * 8 * 2048))
            a("buffer_load_dwordx4 %s, s[12:15], s46 offen lds" % ("v6" if (i & 1) else "v5"))
        elif kind == "Q":
            a("s_add_u32 m0, s%d, %d" % (43 if i else 45, base))
            a("s_nop 0")
            a("buffer_load_dwordx4 %s, s[16:19], s42 offen lds" % ("v9" if i else "v8"))
        else:
            a("s_add_u32 m0, s%d, %d" % (43 if i else 45, base))
            a("s_add_u32 s46, s41, %d" % ("QKV".index(kind) * 2048))
            a("buffer_load_dwordx4 %s, s[16:19], s46 offen lds" % ("v9" if i else "v8"))
    seq = []
    for (k, g, t) in P["order"]:
        for i in range(4 if k == "X" else 3 if (k, g) == ("S", 0) else 2):
            if cfg.get("xb", 0) & 64 and k == "S" and (g, i) not in ((0, 0), (0, 2)): continue
            seq.append((t, AL[(k, g)][1], k, g, i))
    for (k, g) in P["tail"]:
        for i in range(2): seq.append((99, AL[(k, g)][1], k, g, i))
    QA = 16
    def qacc(nb, rb): return QA + (rb * 4 + nb) * 4
    dg.t(0)
    a("s_setprio %d" % cfg.get("lprio0", 3))
    nxt = 0
    last = {}
    for i_, u in enumerate(seq): last[u[0]] = i_
    def issue_one(tdone):
        nonlocal nxt
        if nxt < len(seq) and seq[nxt][1] <= tdone:
            _, _, k, g, i = seq[nxt]
            dma(k, g, i, AL[(k, g)][0]); nxt += 1
            return True
        return False
    def issue_upto(n, tdone):
        while nxt < n and issue_one(tdone): pass
    issue_upto(cfg.get("pre", 15), -1)
    a("""
    v_and_b32 v1, 15, v0             ; row16
    v_lshrrev_b32 v7, 4, v0          ; q
    v_lshrrev_b32 v3, 1, v1
    v_xor_b32 v3, v3, v7
    v_lshlrev_b32 v3, 4, v3
    v_lshlrev_b32 v1, 7, v1
    v_add3_u32 v2, v1, v3, s44       ; A addr ks=0
    v_xor_b32 v3, 64, v2             ; ks=1
    v_add_u32 v14, 0x10000, v2
    v_add_u32 v15, 0x10000, v3
    v_bfe_u32 v1, v0, 2, 2           ; r
    v_lshl_add_u32 v4, v7, 3, v1     ; row = 8q + r
    v_lshrrev_b32 v1, 1, v1
    v_and_b32 v7, 1, v7
    v_lshl_add_u32 v1, v7, 1, v1     ; f(row)
    v_lshlrev_b32 v1, 5, v1
    v_lshl_add_u32 v1, v4, 7, v1
    v_and_b32 v7, 3, v0
    v_lshl_add_u32 v1, v7, 3, v1
    v_add_u32 v10, %d, v1            ; B addr nb=0, window 88K
    v_xor_b32 v11, 32, v10
    v_xor_b32 v12, 64, v10
    v_xor_b32 v13, 96, v10
    v_lshlrev_b32 v1, 2, v7
    v_add_u32 v1, %d, v1             ; 4-word flag read base
    s_lshl_b32 s50, s3, 2
    s_add_u32 s50, s50, %d
    v_mov_b32 v4, s50                ; own flag column
    v_mov_b32 v164, 1
    """ % (11 * G, FLG, FLG))
    BW2 = [5, 6, 8, 9]
    def rdA(gr, ks, rb, dst):
        base = gr * G
        w = base >= 65536
        return ["ds_read_b128 %s, v%d offset:%d" % (q4(dst), (14 if w else 2) + ks, base - w * 65536 + rb * 2048)]
    def rdB(gr, ks, nb, dst):
        if gr >= 11: r_, base = 10 + nb, (gr - 11) * G
        else: r_, base = BW2[nb], (gr - 8) * G
        return ["ds_read_b64_tr_b16 %s, v%d offset:%d" % (pr(dst + 2 * h), r_, base + ks * 4096 + h * 512) for h in range(2)]
    S = LgkmStream(a)
    firstq = [True]
    def qstream(steps, pool, PD, hook_mfma=None, gate=None, after_reads=None, eager=False):
        items = []
        slot = {}
        for n, (xg, ar, qg) in enumerate(steps):
            for ks in range(2):
                v = 2 * n + ks
                if ar is not None:
                    for rb in range(2): slot[(v, "A", rb)] = aslot[(ar, ks, rb)]
                    items += [(v, "B", nb) for nb in range(4)]
                else:
                    items += [(v, "A", 0), (v, "B", 0), (v, "A", 1), (v, "B", 1), (v, "B", 2), (v, "B", 3)]
        rq = []; ip = [0]; gated = set(); lastitem = {}
        for k, it in enumerate(items): lastitem[it[0] // 2] = k
        issued_at = {}
        cnt = [0]
        def feed(vcur, force=None):
            if ip[0] >= len(items): return False
            v, kind, idx = items[ip[0]]
            if force is None and (v > vcur + PD or not pool): return False
            n = v // 2
            if gate and n not in gated:
                for r in rq: S.emit(r)
                del rq[:]
                gate(n); gated.add(n)
            d = pool.pop(0)
            slot[(v, kind, idx)] = d
            xg, ar, qg = steps[n]
            rq.extend(rdA(xg, v % 2, idx, d) if kind == "A" else rdB(qg, v % 2, idx, d))
            if ip[0] == lastitem[n]: issued_at[n] = [cnt[0], d]
            ip[0] += 1
            return True
        def pump(vcur, k):
            for _ in range(k):
                if not rq and not feed(vcur): break
                S.emit(rq.pop(0))
        if eager:
            while feed(99) or rq: S.emit(rq.pop(0))
        else:
            pump(0, cfg.get("qpre", 12))
        sig = 0
        for v in range(2 * len(steps)):
            for nb in range(4):
                for rb in range(2):
                    while (v, "B", nb) not in slot or (v, "A", rb) not in slot: feed(v, force=True)
                    need = {slot[(v, "B", nb)], slot[(v, "A", rb)]}
                    while any(("%s," % q4(d)) in r or ("%s," % pr(d)) in r or ("%s," % pr(d + 2)) in r for d in need for r in rq): S.emit(rq.pop(0))
                    S.emit(mfma16(qacc(nb, rb), slot[(v, "B", nb)], slot[(v, "A", rb)], firstq[0] and v == 0))
                    cnt[0] += 1
                    if rb == 1: pool.append(slot[(v, "B", nb)])
                    if nb == 3: pool.append(slot[(v, "A", rb)])
                    pump(v, 2 if (cnt[0] % 2 == 0) else 1)
                    if after_reads and sig in issued_at and not rq_has(rq, issued_at[sig][1]) and cnt[0] >= issued_at[sig][0] + cfg.get("cpl", 6):
                        if CPM >> sig & 1: S.require({"v%d" % (issued_at[sig][1] + 3)})
                        after_reads(sig); sig += 1
                    if hook_mfma: hook_mfma(v, nb * 2 + rb)
        while after_reads and sig < len(steps):
            S.require({"v%d" % (issued_at[sig][1] + 3)})
            after_reads(sig); sig += 1
        firstq[0] = False
    def rq_has(rq, d): return any(("%s," % q4(d)) in r or ("%s," % pr(d)) in r or ("%s," % pr(d + 2)) in r for r in rq)
    FO = cfg.get("fo", 0)
    def fold(packed):
        assert not firstq[0] and len(pool) >= 5 and not pend
        a("""
        v_and_b32 v14, 15, v0
        v_lshlrev_b32 v14, 2, v14
        s_lshl_b32 s50, s3, 7
        s_add_u32 s50, s50, %d
        v_add_u32 v14, s50, v14          ; row tables by lane row
        v_and_b32 v15, 0x30, v0
        v_add_u32 v15, %d, v15           ; CL q cols
        v_and_b32 v165, 0xfffffff7, v1
        """ % (NML, CL))
        flag_wait(a, 7, 165, 1, sleep=1, off=F_SC - FLG, S=S)
        for rb in range(2):
            S.emit("ds_read2_b32 %s, v14 offset0:%d offset1:%d" % (pr(pool[4] + 2 * rb), rb * 16, rb * 16))
        for nb in range(4):
            S.emit("ds_read_b128 %s, v15 offset:%d" % (q4(pool[nb]), nb * 64))
        a("v_add_u32 v14, 1024, v14")
        for nb in range(4):
            for rb in range(2):
                d = qacc(nb, rb)
                if packed:
                    for h in (0, 2): S.emit("v_pk_fma_f32 %s, %s, %s, %s" % (pr(d + h), pr(pool[nb] + h), pr(pool[4] + 2 * rb), pr(d + h)))
                else:
                    for h in range(4): S.emit("v_fmac_f32 v%d, v%d, v%d" % (d + h, pool[nb] + h, pool[4] + 2 * rb))
    a("; @@PRI:e:1@@")
    STEP = cfg.get("step", 10)
    n1 = 0
    pool = [48 + 4 * k for k in range(29)]
    aslot = {}; bsl = {}; pend = []
    for t in range(17):
        need = last[min(t, 15)]
        issue_upto(need + 1, t - 1)
        assert nxt > need
        if t == 16:
            if cfg.get("mk", 0): need = max(need, mark15 - 1)
            n1 = (need - last[15]) // 2
        w = ["vmcnt(%d)" % (nxt - need - 1)]
        if S.pend: w.append("lgkmcnt(0)"); S.pend = []
        a("s_waitcnt " + " ".join(w))
        if t == 15: mark15 = nxt
        if cfg.get("diag2") == 5:
            if t < 16: dc.t(t)
        elif t in (0, 3, 15): dg.t({0: 1, 3: 2, 15: 3}[t])
        a("s_barrier")
        lim = nxt + STEP
        if nxt > last[15]: lim = nxt + cfg.get("tstep", 2)
        elif lim > last[15] + 1: lim = min(lim, last[15] + 1 + cfg.get("tstep0", 0))
        mq = [(k_, nb, rb) for k_ in pend for nb in range(4) for rb in range(2)]
        rl = []
        if t < 16:
            pk = [("A", (t, ks, rb)) for ks in range(2) for rb in range(2)] if t < 16 - len(P["ret"]) else []
            br = [("B", (g, ks, nb)) for (g, ks) in P["drains"][t] for nb in range(4)]
            while pk or br:
                if br: rl.append(br.pop(0))
                if pk: rl.append(pk.pop(0))
        if t < 16: issue_upto(min(lim, nxt + cfg.get("nd0", 1)), t)
        MPR = cfg.get("mpr", 1); RPR = cfg.get("rpr", 1)
        while mq or rl:
            prog_ = False
            for _ in range(MPR):
                if mq:
                    (g, ks), nb, rb = mq.pop(0)
                    S.emit(mfma16(qacc(nb, rb), bsl[(g, ks, nb)], aslot[(g, ks, rb)], (g, ks) == (0, 0)))
                    if rb == 1: pool.append(bsl[(g, ks, nb)])
                    if nb == 3: pool.append(aslot[(g, ks, rb)])
                    prog_ = True
            for _ in range(RPR):
                if rl and pool:
                    kind, key = rl.pop(0)
                    d = pool.pop(0)
                    if kind == "A":
                        aslot[key] = d
                        S.emit(rdA(AL[("X", t)][0], key[1], key[2], d)[0])
                    else:
                        bsl[key] = d
                        for r in rdB(AL[("Q", key[0])][0], key[1], key[2], d): S.emit(r)
                    prog_ = True
            assert prog_, ("out of registers", t)
            if nxt < lim: issue_one(t)
        pend = list(P["drains"][t]) if t < 16 else []
        if pend: firstq[0] = False
        if t < 16: issue_upto(lim, t)
        if t == 15 and FO == 1:
            a("s_setprio 1")
            fold(False)
            a("s_setprio 3")
    if FO == 2:
        issue_upto(nxt + cfg.get("fon", 6), 16)
        fold(False)
    if cfg.get("lpt") is not None: a("s_setprio %d" % cfg["lpt"])
    if cfg.get("lsl0"): a("s_sleep %d" % cfg["lsl0"])
    lqpub = [False]
    while nxt < len(seq):
        if cfg.get("tthr") is not None and (len(seq) - nxt) % 2 == 0: a("s_waitcnt vmcnt(%d)" % cfg["tthr"])
        if len(seq) - nxt == 2 * cfg.get("tlate", 0):
            if n1 == 0:
                a("s_waitcnt vmcnt(0)")
                a("s_mov_b64 exec, 1")
                a("ds_add_u32 v4, v164 offset:%d" % (F_LQ - FLG))
                a("s_mov_b64 exec, -1")
                lqpub[0] = True
            flag_wait(a, 7, 1, cfg.get("tlf", 2), sleep=1, off=F_KX - FLG)
        assert issue_one(16)
    if cfg.get("p1only"):
        a("s_waitcnt vmcnt(0)")
        dg.t(4)
        a("s_cmp_lg_u32 s3, 0")
        a("s_cbranch_scc1 F_end")
        (dc if cfg.get("diag2") == 5 else dg).out(1)
        a("s_endpgm")
    a("; @@PRI:l:2:DENS@@")
    a("s_setprio %d" % cfg.get("lprio", 1))
    for nb in range(4): a("v_subrev_u32 v%d, %d, v%d" % (BW2[nb], 3 * G, 10 + nb))
    a.srd(16, 72, 4 * MB, O_OFF)
    a.srd(24, 72, ZB, KV_OFF)
    assert all(g_ < 8 for g_ in P["xs"].values())
    a("""
    s_mov_b32 s40, 0x%x              ; 2^-60 / log2e
    s_mov_b32 s41, s40
    s_mov_b32 s74, 0x%x              ; eps
    s_mov_b32 s75, s74
    s_mov_b32 s76, 0x%x              ; 2^60
    s_mov_b32 s77, s76
    s_lshl_b32 s79, s32, 18
    s_lshl_b32 s80, s3, 16
    s_add_u32 s79, s79, s80
    s_lshl_b32 s80, s10, 11
    s_add_u32 s79, s79, s80          ; o store base rb=0
    s_add_u32 s80, s79, 0x8000
    s_lshl_b32 s45, s32, 2
    s_add_u32 s45, s45, s3
    s_lshl_b32 s45, s45, 10          ; o counters [i][w][*]
    s_mov_b32 s46, 0x%x
    """ % (f32(2.0 ** -60 / 1.4426950408889634), EPS6, f32(2.0 ** 60), LOG2E))
    s_addr(a, 54, 45, KV_OFF + R_O)
    if not FO: fold(True)
    LQ0 = cfg.get("lq0", 6)
    if lqpub[0]: LQ0 = P["nq0"] - cfg["tlate"]
    elif n1 == 0:
        a("s_waitcnt vmcnt(%d)" % (2 * (P["nq0"] - LQ0)))
        a("s_mov_b64 exec, 1")
        a("ds_add_u32 v4, v164 offset:%d" % (F_LQ - FLG))
        a("s_mov_b64 exec, -1")
    if cfg.get("qs", 1):
        flag_wait(a, 7, 1, cfg.get("qs", 1), sleep=2, off=F_KX - FLG)
    dg.t(4)
    steps = [(P["xs"].get(n), None if n in P["xs"] else QO[n], P["qs"][n]) for n in range(NST)]
    assert len(pool) >= 4
    lqset = [False]
    TL_ = cfg.get("tlate", 0)
    lev = [(n1, 2 * TL_)] + ([(P["nq0"] - TL_, 0)] if TL_ else [])
    lqn = [0]
    if n1 == 0:
        lev = [(0, None), (LQ0, 0)]; lqn = [1]
    def gate(n):
        for k_, (n0, vm_) in enumerate(lev):
            if n0 >= P["nq0"]: continue
            if n + cfg.get("lqa", 2) >= n0 and lqn[0] == k_:
                a("s_waitcnt vmcnt(%d)" % vm_)
                a("s_mov_b64 exec, 1")
                S.emit("ds_add_u32 v4, v164 offset:%d" % (F_LQ - FLG))
                a("s_mov_b64 exec, -1")
                lqn[0] += 1
            if n == n0: flag_wait(a, 7, 1, k_ + 1, off=F_LQ - FLG, S=S)
        if n == P["nq0"]: flag_wait(a, 7, 1, 1, off=F_LP - FLG, S=S)
    CPM = cfg.get("cpm", 0xffff) | (1 << (NST - 1))
    def prog(n):
        if CPM >> n & 1: fset(4, 165, n + 1, off=F_CP - FLG, S=S)
    rsl = []
    def hk2(v, k):
        if v == 2 * NST - 2 and k == 0:
            rsl.append(pool.pop())
            for rb in range(2):
                S.emit("ds_read2_b32 %s, v14 offset0:%d offset1:%d" % (pr(rsl[0] + 2 * rb), rb * 16, rb * 16))
        if cfg.get("diag2") == 2 and v % 2 == 1 and k == 7: dc.t(v // 2, S)
    qstream(steps, pool, cfg.get("pdq", 2), hook_mfma=hk2, gate=gate, after_reads=prog)
    dg.t(5, S)
    if cfg.get("xsl5"): a("s_sleep %d" % cfg["xsl5"])
    a("s_setprio %d" % cfg.get("lprio2", 3))
    TMP = 80; QP = 112; KF = 128
    a("""
    v_lshlrev_b32 v6, 4, v0
    v_lshlrev_b32 v8, 2, v0
    v_add_u32 v8, %d, v8             ; KVA addr
    v_mov_b32 v11, 0x%x
    """ % (P["kva"] * G, f32(1e-6 * 1.4426950408889634)))
    for rb in range(2):
        for nb in range(4):
            d = qacc(nb, rb)
            for h in (0, 2):
                S.emit("v_pk_mul_f32 %s, %s, %s" % (pr(d + h), pr(d + h), pr(rsl[0] + 2 * rb)))
    for x_ in phi([QA + 2 * i for i in range(16)], TMP): a(x_)
    for x_ in pack_list(QP, QA, 32): a(x_)
    S.drain()
    dg.t(6)
    KR = [16, 40]
    def kvreads(hh):
        for db in range(2):
            a("ds_read_b128 %s, v5 offset:%d" % (q4(KR[hh] + 16 + 4 * db), hh * 128 + db * 64))
        for t_ in range(4):
            for r in (0, 2):
                o_ = (hh * 2048 + (t_ >> 1) * 4096 + (t_ & 1) * 1024) // 256 + r
                a("ds_read2st64_b32 %s, v8 offset0:%d offset1:%d" % (pr(KR[hh] + 4 * t_ + r), o_, o_ + 1))
    a("v_and_b32 v9, 0xfffffff7, v1")
    a("v_and_b32 v5, 0x30, v0")
    a("v_add_u32 v5, %d, v5" % ZX)
    if cfg.get("ga", 0): a("v_add_u32 v5, %d, v6" % KX)
    KT_ = cfg.get("kt", 1)
    if not KT_:
        flag_wait(a, 7, 9, 1, sleep=cfg.get("kws", 1), off=F_KV - FLG)
        flag_wait(a, 7, 9, 2, sleep=0, off=F_KV - FLG)
        dg.t(7)
    if cfg.get("xsl4"): a("s_sleep %d" % cfg["xsl4"])
    def nd(u): return 64 + 12 * u
    def fin1(u):
        d = nd(u)
        a("v_fma_f32 v%d, v%d, s46, v11" % (d + 8, d + 8))
        a("v_rcp_f32 v%d, v%d" % (d + 8, d + 8))
    def fin2(u):
        hh, rb = u >> 1, u & 1
        d = nd(u)
        for i in range(8):
            a("v_mul_f32 v%d, v%d, v%d" % (d + i, d + i, d + 8))
        for x_ in pack_list(16 + 4 * u, d, 8): a(x_)
        a("buffer_store_dwordx4 %s, v6, s[16:19], s%d offen offset:%d sc0 sc1" % (q4(16 + 4 * u), 79 + rb, hh * 1024))
    if KT_:
        assert not cfg.get("ga") and not cfg.get("pk")
        a("v_and_b32 v8, 15, v0")
        a("v_lshlrev_b32 v8, 6, v8")
        a("v_and_b32 v10, 0x30, v0")
        a("v_add_u32 v8, v8, v10")
        a("v_add_u32 v8, %d, v8" % (P["kva"] * G))
        def rd(hh):
            for db in range(2):
                a("ds_read_b128 %s, v5 offset:%d" % (q4(KR[hh] + 16 + 4 * db), hh * 128 + db * 64))
            for t_ in range(4):
                a("ds_read_b128 %s, v8 offset:%d" % (q4(KR[hh] + 4 * t_), hh * 2048 + (t_ >> 1) * 4096 + (t_ & 1) * 1024))
        def fp1(u):
            d = nd(u)
            a("v_fma_f32 v%d, v%d, s46, v11" % (d + 8, d + 8))
            a("v_rcp_f32 v%d, v%d" % (d + 8, d + 8))
        def fp2(u, packed):
            hh, rb = u >> 1, u & 1
            d = nd(u)
            if packed:
                a("v_mov_b32 v%d, v%d" % (d + 9, d + 8))
                for i in range(0, 8, 2): a("v_pk_mul_f32 %s, %s, %s" % (pr(d + i), pr(d + i), pr(d + 8)))
            else:
                for i in range(8): a("v_mul_f32 v%d, v%d, v%d" % (d + i, d + i, d + 8))
            for x_ in pack_list(152 + 4 * (u % 3), d, 8) if u < 3 else pack_list(16, d, 8): a(x_)
            a("buffer_store_dwordx4 %s, v6, s[16:19], s%d offen offset:%d sc0 sc1" % (q4(152 + 4 * u if u < 3 else 16), 79 + rb, hh * 1024))
        a("F_kw:")
        spin_guard(a)
        a("ds_read_b32 v7, v9 offset:%d" % (F_KV - FLG))
        rd(0); rd(1)
        a("s_waitcnt lgkmcnt(12)")
        a("v_cmp_gt_u32 vcc, 2, v7")
        a("s_cbranch_vccz F_kx")
        a("s_waitcnt lgkmcnt(0)")
        if cfg.get("kws", 0): a("s_sleep %d" % cfg["kws"])
        a("s_branch F_kw")
        a("F_kx:")
        dg.t(7)
        for hh in range(2):
            pk_ = pack_list(KF + 12 * hh, KR[hh], 24)
            for n_, j in enumerate((2, 0, 1)):
                a("s_waitcnt lgkmcnt(%d)" % (10 - 6 * hh - 2 * n_))
                for x_ in pk_[4 * j:4 * j + 4]: a(x_)
                if hh == 1 and j == 2:
                    for u in range(2): fp1(u)
                for rb in range(2):
                    a(mfma16(nd(2 * hh + rb) + 4 * j, KF + 12 * hh + 4 * j, QP + 8 * rb + 4 * hh, True))
        OPK = cfg.get("opk", 1)
        fp2(0, False)
        for u in range(2, 4): fp1(u)
        for u in range(1, 4): fp2(u, OPK)
    elif cfg.get("ga", 0):
        for hh in range(2):
            a("ds_read_b128 %s, v5 offset:%d" % (q4(KF + 12 * hh + 8), (hh + 2) * 2048))
            for eb in range(2):
                a("ds_read_b128 %s, v5 offset:%d" % (q4(KF + 12 * hh + 4 * eb), hh * 2048 + eb * 1024))
        for hh in range(2):
            a("s_waitcnt lgkmcnt(%d)" % (3 if hh == 0 else 0))
            for rb in range(2):
                for j in (2, 0, 1):
                    a(mfma16(nd(2 * hh + rb) + 4 * j, KF + 12 * hh + 4 * j, QP + 8 * rb + 4 * hh, True))
    elif cfg.get("pk"):
        R_ = cfg["pk"]
        def kb_(hh): return [16, 40][hh]
        npend = []
        for hh in range(2):
            for db in range(2):
                S.emit("ds_read_b128 %s, v5 offset:%d" % (q4(kb_(hh) + 16 + 4 * db), hh * 128 + db * 64))
            for eb in range(2):
                for rp in range(R_):
                    for r in (0, 2):
                        o_ = (hh * 2048 + rp * 4096 + eb * 1024) // 256 + r
                        S.emit("ds_read2st64_b32 %s, v8 offset0:%d offset1:%d" % (pr(kb_(hh) + 8 * rp + 4 * eb + r), o_, o_ + 1))
        for hh in range(2):
            for x_ in pack_list(KF + 4 * hh, kb_(hh) + 16, 8): S.emit(x_)
            for rb in range(2): S.emit(mfma16(nd(2 * hh + rb) + 8, KF + 4 * hh, QP + 8 * rb + 4 * hh, True))
            if hh == 1:
                for u in range(2): fin1(u)
            for eb in range(2):
                for rp in range(R_):
                    for rb in range(2):
                        S.emit(mfma16(nd(2 * hh + rb) + 4 * eb, kb_(hh) + 8 * rp + 4 * eb, QP + 8 * rb + 4 * hh, rp == 0))
                if hh == 1: fin2(eb)
        for u in range(2, 4): fin1(u)
        for u in range(2, 4): fin2(u)
    else:
        kvreads(0)
        a("s_waitcnt lgkmcnt(5)")
        kvreads(1)
        for hh in range(2):
            a("s_waitcnt lgkmcnt(%d)" % (10 if hh == 0 else 0))
            pk_ = pack_list(KF + 12 * hh, KR[hh], 24)
            for j in (2, 0, 1):
                for x_ in pk_[4 * j:4 * j + 4]: a(x_)
                if hh == 1 and j == 2:
                    for u in range(2): fin1(u)
                for rb in range(2):
                    a(mfma16(nd(2 * hh + rb) + 4 * j, KF + 12 * hh + 4 * j, QP + 8 * rb + 4 * hh, True))
                if hh == 1 and j != 2: fin2(j)
        for u in range(2, 4): fin1(u)
        for u in range(2, 4): fin2(u)
    if cfg.get("ga", 0):
        for u in range(4): fin1(u); fin2(u)
    dg.t(8)
    a("s_mov_b64 exec, 1")
    a("ds_write_b32 v4, v164 offset:%d" % (F_OA - FLG))
    a("s_waitcnt vmcnt(0)")
    TH = cfg.get("th", 0)
    if TH:
        a("s_lshl_b32 s45, 1, s10")
        for k in range(4): a("s_atomic_or s45, s[54:55], 0x%x" % (k * 128))
    else:
        s_signal(a, 54, 45, n=cfg.get("ro", 4))
    a("ds_add_u32 v4, v164 offset:%d" % (F_OA - FLG))
    a("s_mov_b64 exec, -1")
    dg.t(9)
    if TH:
        a("""
        s_lshl_b32 s51, s28, 2
        s_add_u32 s51, s51, s3
        s_lshl_b32 s51, s51, 3
        s_add_u32 s47, s29, 2
        s_and_b32 s47, s47, 3
        s_add_u32 s51, s51, s47
        s_lshl_b32 s51, s51, 7
        s_waitcnt lgkmcnt(0)
        """)
        s_addr(a, 56, 51, KV_OFF + R_O)
        s_poll(a, 56, 0xffff, 58, sleep=cfg.get("als", 2))
        fset(4, 7, 1, off=F_LP - FLG)
    if cfg.get("yst", 1):
        assert not TH and not any(x_[1] == "wq" for x_ in P["acts"])
        a("v_mov_b32 v2, %d" % (F_SC + 8))
        flag_wait(a, 7, 2, 1, sleep=2)
        a("""
        v_and_b32 v2, 7, v0
        v_lshlrev_b32 v2, 2, v2
        v_add_u32 v2, %d, v2
        ds_read_b32 v2, v2
        s_lshl_b32 s51, s28, 2
        s_add_u32 s51, s51, s3
        s_sub_u32 s51, 63, s51
        s_waitcnt lgkmcnt(0)
        v_bfe_u32 v2, v2, 5, 6
        v_cmp_eq_u32 vcc, s51, v2
        s_and_b32 s52, vcc_lo, 0xff      ; tokens inside this wave's 32 rows
        s_cbranch_scc0 F_ny
        s_lshr_b32 s53, s29, 1           ; tj
        s_lshl_b32 s50, s53, 2
        s_and_b32 s51, s28, 3
        s_add_u32 s50, s50, s51
        s_lshl_b32 s50, s50, 7
        """ % SELL)
        s_addr(a, 56, 50, KV_OFF + R_Y)
        a.srd(20, 72, MB, YP_OFF)
        a("""
        s_lshl_b32 s53, s53, 17
        s_and_b32 s51, s29, 1
        s_lshl_b32 s51, s51, 8
        s_add_u32 s53, s53, s51
        v_lshrrev_b32 v2, 4, v0
        v_and_b32 v6, 15, v0
        v_lshlrev_b32 v6, 4, v6
        v_lshl_add_u32 v2, v2, 9, v6
        v_add_u32 v6, %d, v6
        """ % YL)
        s_poll(a, 56, 0 if cfg.get("nochain") else 32, 58, sleep=cfg.get("ys", 2))
        a("F_yl:")
        a("s_ff1_i32_b32 s50, s52")
        a("s_bitset0_b32 s52, s50")
        a("s_lshl_b32 s51, s50, 14")
        a("s_add_u32 s51, s51, s53")
        for n in range(8):
            if n % 2 == 0 and n: a("s_add_u32 s51, s51, 4096")
            a("buffer_load_dwordx4 %s, v2, s[20:23], s51 offen offset:%d sc0 sc1" % (q4(16 + 4 * n), (n % 2) * 2048))
        a("s_lshl_b32 s50, s50, 8")
        a("v_add_u32 v3, s50, v6")
        a("s_waitcnt vmcnt(0)")
        for h in (16, 8, 4):
            for i in range(h): a("v_add_f32 v%d, v%d, v%d" % (16 + i, 16 + i, 16 + h + i))
        for op in ("v_permlane32_swap_b32", "v_permlane16_swap_b32"):
            for i in range(4): a("v_mov_b32 v%d, v%d" % (20 + i, 16 + i))
            for i in range(4): a("%s v%d, v%d" % (op, 16 + i, 20 + i))
            for i in range(4): a("v_add_f32 v%d, v%d, v%d" % (16 + i, 16 + i, 20 + i))
        a("s_mov_b64 exec, 0xffff")
        a("ds_write_b128 v3, v[16:19]")
        a("s_mov_b64 exec, -1")
        a("s_waitcnt lgkmcnt(0)")
        a("s_cmp_lg_u32 s52, 0")
        a("s_cbranch_scc1 F_yl")
        fset(4, 7, 1, off=F_LP - FLG)
    else:
        a("s_cmp_lg_u32 s3, 0")
        a("s_cbranch_scc1 F_end")
        a("s_setprio %d" % cfg.get("yprio", 3))
        a("s_lshr_b32 s50, s29, 1")
        a("s_lshl_b32 s50, s50, 2")
        a("s_and_b32 s51, s28, 3")
        a("s_add_u32 s50, s50, s51")
        a("s_lshl_b32 s50, s50, 7")
        s_addr(a, 56, 50, KV_OFF + R_Y)
        a("v_mov_b32 v2, %d" % (F_SC + 8))
        flag_wait(a, 7, 2, 1, sleep=2)
        a("""
        v_and_b32 v2, 7, v0
        v_lshlrev_b32 v2, 2, v2
        v_add_u32 v2, %d, v2
        ds_read_b32 v2, v2
        s_sub_u32 s51, 15, s28
        s_waitcnt lgkmcnt(0)
        v_bfe_u32 v2, v2, 7, 4
        v_cmp_eq_u32 vcc, s51, v2
        s_cbranch_vccz F_ny
        """ % SELL)
        a("""
        v_lshrrev_b32 v2, 4, v0
        v_and_b32 v6, 15, v0
        v_lshlrev_b32 v6, 4, v6
        v_lshl_add_u32 v2, v2, 12, v6
        s_lshl_b32 s50, s29, 8
        s_add_u32 s50, s50, %d
        """ % Y_REL)
        s_poll(a, 56, 0 if cfg.get("nochain") else 32, 58, sleep=cfg.get("ys", 2))
        a("s_mov_b32 m0, %d" % YL)
        a("s_nop 0")
        a("buffer_load_dwordx4 v2, s[24:27], s50 offen sc0 sc1 lds")
        a("s_add_u32 s50, s50, 16384")
        a("s_add_u32 m0, m0, 1024")
        a("s_nop 0")
        a("buffer_load_dwordx4 v2, s[24:27], s50 offen sc0 sc1 lds")
        a("s_waitcnt vmcnt(0)")
        fset(4, 7, 1, off=F_Y - FLG)
    a("F_ny:")
    dg.t(10)
    if dg.on:
        a("s_cmp_lg_u32 s3, 0")
        a("s_cbranch_scc1 F_end")
    dg.out(1)
    if cfg.get("diag2") == 2: dc.out(3)
    a("F_end:")
    a("s_endpgm")

    a("; @@PRI:-:0@@")
    a("F_nl:")
    a("s_sub_u32 s3, s3, 4")
    import g4c, g4a
    env = dict(cfg=cfg, P=P, AL=AL, QO=QO, NST=NST, KT=KT, CST=CST, MS=MS, KX=KX, NT=NT, dg=dg, dc=dc, fset=fset, name=name)
    g4c.compute(a, env)
    g4a.aux(a, env)
    a("; @@PRI:-:0@@")
    guard_stubs(a)
    a("F_codeend:")
    a.end_kernel(name, 168, 98)


def build(cfg, path):
    a = Asm()
    gen(a, cfg)
    a.lines = hazard.pad(a.lines, verbose=True)
    hdr = open(os.path.join(os.path.dirname(os.path.abspath(__file__)), "..", NAME + ".s.ref")).read().split("; Override")[0]
    txt = a.text(hdr)
    txt = txt.replace("; @launch kernel=%s_kernel grid" % NAME, "; @launch grid")
    if cfg.get("al12", 1): txt = txt.replace(".p2align 8\n", ".p2align 12\n.p2align 8\n", 1)
    import iwarm
    txt = txt.replace("DENS", str(cfg.get("dens", 768)))
    txt = iwarm.process(txt, NAME + "_kernel", stubs=cfg.get("iw", 1), align=cfg.get("align", 3))
    open(path, "w").write(txt)


if __name__ == "__main__":
    sys.modules["g4"] = sys.modules["__main__"]
    cfg = dict(yst=0, fo=1, lprio=2, cap=12, ss=2, s1=1, s2=0, kd0=2, pre=16, xp=0, msc=4, c2=0, sb3=0, w0=2, fl=1, tw=2, rot=4, rotb=1, wd=3, selwg=248, step=11, nd=16, nsw=1, de=0, swn=8, ds=3, mwf=99, aprio2=1, qrot=0, cpm=0x5a, swp=4, align=0, dens=4096, kdf=1, me13=4, me14=4, me15=0)
    out = "/code/" + NAME + ".s"
    for arg in sys.argv[1:]:
        if "=" in arg:
            k, v = arg.split("=")
            cfg[k] = int(v, 0)
        else:
            out = arg
    build(cfg, out)
```
